```python
import torch

def _softmax(x, axis=-1):
    return torch.softmax(x, dim=axis)

def _gelu(x):
    return torch.nn.functional.gelu(x, approximate='tanh')

def _silu(x):
    return torch.nn.functional.silu(x)

def _sigmoid(x):
    return torch.sigmoid(x)

def _layernorm(x, axis=-1, eps=1e-05):
    m = x.mean(dim=axis, keepdim=True)
    v = x.var(dim=axis, keepdim=True, unbiased=False)
    return (x - m) / torch.sqrt(v + eps)

def _scatter_add(tgt, idx, src, axis=0):
    return tgt.clone().index_add_(axis, idx, src)

def _segment_sum(src, seg, n):
    out = torch.zeros((n,) + src.shape[1:], dtype=src.dtype)
    return out.index_add_(0, seg, src)

def _pad(x, pw):
    flat = tuple((v for pair in reversed(pw) for v in pair))
    return torch.nn.functional.pad(x, flat)
kernel_name = 'gated_mix__memory_aug_recurrent_mem_tr__ssm_conv_h3__prompt'

def setup_inputs():

    _w = lambda a: (lambda t: t.to(torch.bfloat16) if t.is_floating_point() else t)(torch.as_tensor(a))

    def _A_setup():
        B, S, Dm = (1, 2048, 640)
        H, Dh = (32, 192)
        M, seg = (8, 32)
        seg = min(seg, S)
        S = S // seg * seg
        return {'x': _w((lambda *s: torch.randn(*s, dtype=torch.bfloat16) * 0.05)(B, S, Dm)), 'mem0': _w((lambda *s: torch.randn(*s, dtype=torch.bfloat16) * 0.4)(B, M, Dm)), 'Wq': _w((lambda *s: torch.randn(*s, dtype=torch.bfloat16) * 6.4)(Dm, H, Dh) * Dm ** (-0.5)), 'Wk': _w((lambda *s: torch.randn(*s, dtype=torch.bfloat16) * 6.4)(Dm, H, Dh) * Dm ** (-0.5)), 'Wv': _w((lambda *s: torch.randn(*s, dtype=torch.bfloat16) * 0.4)(Dm, H, Dh) * Dm ** (-0.5)), 'Wo': _w((lambda *s: torch.randn(*s, dtype=torch.bfloat16) * 0.4)(H, Dh, Dm) * (H * Dh) ** (-0.5)), 'seg_len': seg}
    _A_in = _A_setup()

    def _B_setup():
        B, S, D = (1, 2048, 640)
        ks = 4
        return {'q': _w((lambda *s: torch.randn(*s, dtype=torch.bfloat16) * 0.05)(B, S, D)), 'k': _w((lambda *s: torch.randn(*s, dtype=torch.bfloat16) * 0.4)(B, S, D)), 'v': _w((lambda *s: torch.randn(*s, dtype=torch.bfloat16) * 0.4)(B, S, D)), 'shift_k': _w((lambda *s: torch.randn(*s, dtype=torch.bfloat16) * 0.4)(D, ks) * 0.5), 'ssm_k': _w((lambda *s: torch.randn(*s, dtype=torch.bfloat16) * 0.4)(D, S) * (1.0 / S ** 0.5)), 'ssm_D': _w((lambda *s: torch.randn(*s, dtype=torch.bfloat16) * 0.4)(D))}
    _B_in = _B_setup()
    return {'A_x': _A_in['x'], 'A_mem0': _A_in['mem0'], 'A_Wq': _A_in['Wq'], 'A_Wk': _A_in['Wk'], 'A_Wv': _A_in['Wv'], 'A_Wo': _A_in['Wo'], 'A_seg_len': _A_in['seg_len'], 'B_q': _B_in['q'], 'B_k': _B_in['k'], 'B_v': _B_in['v'], 'B_shift_k': _B_in['shift_k'], 'B_ssm_k': _B_in['ssm_k'], 'B_ssm_D': _B_in['ssm_D'], 'gate_w': _w((lambda *s: torch.randn(*s, dtype=torch.bfloat16) * 0.05)(640) * 16.0)}

def reference(A_x, A_mem0, A_Wq, A_Wk, A_Wv, A_Wo, A_seg_len, B_q, B_k, B_v, B_shift_k, B_ssm_k, B_ssm_D, gate_w):

    def _A_ref(x, mem0, Wq, Wk, Wv, Wo, seg_len):
        B, S, Dm = x.shape
        H, Dh = (Wq.shape[1], Wq.shape[2])
        M = mem0.shape[1]
        scale = Dh ** (-0.5)
        n_seg = S // seg_len
        L = M + seg_len
        idx = torch.arange(L)
        mask = (idx[:, None] < M) | (idx[:, None] >= idx[None, :])
        mem = mem0
        outs = []
        for s in range(n_seg):
            xs = x[:, s * seg_len:(s + 1) * seg_len, :].clone()
            h = torch.concatenate([mem, xs], axis=1)
            q = torch.einsum('btd,dhe->bhte', h, Wq)
            k = torch.einsum('btd,dhe->bhte', h, Wk)
            v = torch.einsum('btd,dhe->bhte', h, Wv)
            scores = torch.einsum('bhqe,bhke->bhqk', q, k) * scale
            scores = torch.where(mask[None, None], scores, -1000000000.0)
            p = _softmax(scores, axis=-1)
            o = torch.einsum('bhqk,bhke->bhqe', p, v)
            o = torch.einsum('bhte,hed->btd', o, Wo)
            mem = o[:, :M, :].clone()
            outs.append(o[:, M:, :])
        return torch.concatenate(outs, axis=1)

    def _B_ref(q, k, v, shift_k, ssm_k, ssm_D):
        B, S, D = q.shape
        ks = shift_k.shape[-1]
        k_pad = _pad(k, ((0, 0), (ks - 1, 0), (0, 0)))
        k_shift = torch.zeros_like(k)
        for t in range(ks):
            k_shift = k_shift + k_pad[:, t:t + S, :] * shift_k[:, ks - 1 - t][None, None, :]
        kv = k_shift * v
        L = 2 * S
        kv_pad = _pad(kv, ((0, 0), (0, S), (0, 0)))
        kf_pad = _pad(ssm_k, ((0, 0), (0, S)))
        kv_f = (lambda x, axes=(-2, -1): torch.fft.rfft2(x.float(), dim=axes))(kv_pad[:, None, :, :], axes=(1, 2))
        kf_f = (lambda x, axes=(-2, -1): torch.fft.rfft2(x.float(), dim=axes))(kf_pad[:, None, :], axes=(1, 2))
        kf_f = (lambda x, *d: x.permute(*d))(kf_f, 1, 2, 0)
        y_f = kv_f * kf_f[None, :, :, :]
        y = (lambda x, s, axes=(-2, -1): torch.fft.irfft2(x, s=s, dim=axes).to(torch.bfloat16))(y_f, (1, L), axes=(1, 2))[:, 0, :S, :]
        y = y + kv * ssm_D[None, None, :]
        return q * y
    x = A_x
    g = _sigmoid((x * gate_w).sum(-1, keepdims=True))
    a = _A_ref(x, A_mem0, A_Wq, A_Wk, A_Wv, A_Wo, A_seg_len)
    b = _B_ref(x, B_k, B_v, B_shift_k, B_ssm_k, B_ssm_D)
    return g * a + (1 - g) * b
```

```python
import re

REG_RE = re.compile(r'^(-|abs\()?([vas])(\d+)\)?$')
RNG_RE = re.compile(r'^(-|abs\()?([vas])\[(\d+):(\d+)\]\)?$')
TRANS = ('v_exp_f32', 'v_log_f32', 'v_rcp_f32', 'v_rsq_f32', 'v_sqrt_f32', 'v_sin_f32', 'v_cos_f32', 'v_rcp_iflag_f32')


def regs_of(op):
    op = op.strip()
    m = REG_RE.match(op)
    if m:
        return [(m.group(2), int(m.group(3)))]
    m = RNG_RE.match(op)
    if m:
        return [(m.group(2), i) for i in range(int(m.group(3)), int(m.group(4)) + 1)]
    if op == 'vcc':
        return [('s', 'vcc')]
    if op in ('vcc_lo', 'vcc_hi'):
        return [('s', 'vcc')]
    if op == 'm0':
        return [('s', 'm0')]
    if op in ('exec', 'exec_lo', 'exec_hi'):
        return [('s', 'exec')]
    return []


def split_ops(s):
    out, depth, cur = [], 0, ''
    for ch in s:
        if ch in '[(':
            depth += 1
        if ch in '])':
            depth -= 1
        if ch == ',' and depth == 0:
            out.append(cur.strip())
            cur = ''
        else:
            cur += ch
    if cur.strip():
        out.append(cur.strip())
    return out


def mfma_passes(mn):
    if '32x32' in mn:
        return 16 if mn.endswith('x2_f32') else 8
    if '4x4x4' in mn:
        return 2
    if mn.endswith('x4_f32'):
        return 8
    return 4


class Ins:
    __slots__ = ('text', 'mn', 'kind', 'w', 'r', 'srcC', 'srcAB', 'passes', 'states', 'target', 'dpp', 'store_data',
                 'lds_dma', 'sreads', 'label', 'opsel', 'cnt', 'pad')

    def __init__(self, text):
        self.text = text
        self.label = None
        self.kind = 'other'
        self.w, self.r, self.srcC, self.srcAB, self.store_data = [], [], [], [], []
        self.passes = 0
        self.states = 1
        self.target = None
        self.dpp = False
        self.lds_dma = False
        self.opsel = False
        self.cnt = None
        self.pad = None
        t = text.split(';')[0].strip()
        if t.endswith(':'):
            self.kind = 'label'
            self.label = t[:-1]
            self.states = 0
            self.mn = ''
            return
        if not t or t.startswith('.'):
            self.kind = 'dir'
            self.states = 0
            self.mn = ''
            return
        parts = t.split(None, 1)
        mn = parts[0]
        self.mn = mn
        rest = parts[1] if len(parts) > 1 else ''
        ops = split_ops(rest)
        mods = ''
        if ops:
            last = ops[-1].split(None, 1)
            if len(last) > 1 and '(' not in last[0]:
                ops[-1] = last[0]
                mods = last[1]
        R = [regs_of(o) for o in ops]
        if mn == 's_nop':
            self.kind = 'nop'
            self.states = int(ops[0], 0) + 1
        elif mn.startswith('s_cbranch') or mn == 's_branch':
            self.kind = 'branch'
            self.target = ops[0]
        elif mn == 's_endpgm':
            self.kind = 'end'
        elif mn == 's_waitcnt':
            self.kind = 'wait'
            self.cnt = dict((k, int(v)) for k, v in re.findall(r'(vmcnt|lgkmcnt)\((\d+)\)', rest))
        elif mn.startswith('v_mfma') or mn.startswith('v_smfmac'):
            self.kind = 'mfma'
            self.passes = mfma_passes(mn)
            self.w = R[0]
            if mn.startswith('v_smfmac'):
                self.srcC = R[0]
                self.srcAB = R[1] + R[2] + R[3]
            else:
                self.srcC = R[3]
                self.srcAB = R[1] + R[2]
            self.r = self.srcC + self.srcAB
        elif mn.startswith('v_'):
            self.kind = 'valu'
            self.dpp = ('_dpp' in mn) or ('row_' in mods) or ('quad_perm' in mods)
            self.opsel = ('dst_sel' in mods)
            if mn == 'v_nop':
                pass
            elif mn.startswith('v_permlane') and 'swap' in mn:
                self.w = R[0] + R[1]
                self.r = R[0] + R[1]
            elif mn.startswith('v_cmp'):
                self.w = R[0]
                self.r = sum(R[1:], [])
            elif '_co_' in mn:
                self.w = R[0] + R[1]
                self.r = sum(R[2:], [])
            else:
                self.w = R[0]
                self.r = sum(R[1:], [])
                if mn.startswith(('v_fmac', 'v_writelane', 'v_pk_fmac', 'v_dot2c')) or self.dpp or self.opsel:
                    self.r = self.r + R[0]
                if mn.startswith('v_cndmask') and len(ops) == 3:
                    self.r = self.r + [('s', 'vcc')]
        elif mn.startswith('ds_'):
            self.kind = 'ds'
            if mn.startswith(('ds_read', 'ds_bpermute', 'ds_permute', 'ds_swizzle')) or '_rtn' in mn:
                self.w = R[0]
                self.r = sum(R[1:], [])
            else:
                self.r = sum(R, [])
        elif mn.startswith('buffer_') or mn.startswith('global_'):
            self.kind = 'vmem'
            if mn in ('buffer_wbl2', 'buffer_inv'):
                pass
            elif 'lds' in mods.split() or '_lds_' in mn:
                self.lds_dma = True
                self.r = sum(R, []) + [('s', 'm0')]
            elif '_load' in mn:
                self.w = R[0]
                self.r = sum(R[1:], [])
                if 'd16' in mn:
                    self.r = self.r + R[0]
            elif 'atomic' in mn:
                self.r = sum(R, [])
                if 'sc0' in mods.split():
                    self.w = R[0]
            else:
                self.r = sum(R, [])
                data = R[0] if mn.startswith('buffer_') else R[1]
                if len(data) >= 3:
                    self.store_data = data
        elif mn.startswith('s_load') or mn.startswith('s_buffer_load') or mn.startswith('s_memtime') or mn.startswith('s_memrealtime') or mn.startswith('s_atomic'):
            self.kind = 'smem'
            self.w = R[0]
            self.r = sum(R[1:], [])
        elif mn.startswith('s_'):
            self.kind = 'salu'
            if mn.startswith(('s_cmp', 's_bitcmp', 's_barrier', 's_setprio', 's_sleep', 's_sethalt', 's_setreg')):
                self.r = sum(R, [])
            else:
                self.w = R[0] if R else []
                self.r = sum(R[1:], [])
                if 'saveexec' in mn:
                    self.w = self.w + [('s', 'exec')]
        else:
            raise ValueError('cannot parse: ' + text)


P_IDX = {2: 0, 4: 1, 8: 2, 16: 3}
T_C_OVL = (4, 6, 10, 18)
T_AB = (5, 8, 12, 20)
T_WAR = (1, 3, 7, 15)
MAXAGE = 21


def need(ins, st):
    req = 0

    def chk(key, n):
        nonlocal req
        a = st.get(key)
        if a is not None and a < n:
            req = max(req, n - a)

    k = ins.kind
    if k == 'mfma':
        for r in ins.r:
            chk(('valu_w', r), 2)
        for r in ins.srcAB:
            for p in P_IDX:
                chk(('mfma_w', r, p), T_AB[P_IDX[p]])
        if ins.srcC:
            cs = tuple(ins.srcC)
            for r in ins.srcC:
                for p in P_IDX:
                    a = st.get(('mfma_w', r, p))
                    if a is None:
                        continue
                    same = st.get(('mfma_d', cs, ins.mn))
                    if same is not None and same == a and p == ins.passes:
                        chk(('mfma_w', r, p), 2 if p == 2 else 0)
                    else:
                        chk(('mfma_w', r, p), T_C_OVL[P_IDX[p]])
        if not ins.srcC or ins.srcC != ins.w:
            for r in ins.w:
                for p in P_IDX:
                    chk(('mfma_w', r, p), T_C_OVL[P_IDX[p]])
    if k in ('valu', 'ds', 'vmem'):
        for r in ins.r + ins.w:
            for p in P_IDX:
                chk(('mfma_w', r, p), T_AB[P_IDX[p]])
    if k == 'valu':
        for r in ins.w:
            for p in P_IDX:
                chk(('mfma_c', r, p), T_WAR[P_IDX[p]])
            chk(('st_data', r), 2)
        perm = ins.mn.startswith('v_permlane')
        rl = ins.mn.startswith(('v_readlane', 'v_readfirstlane'))
        for r in ins.r:
            if r[0] in 'va':
                if perm or ins.dpp:
                    chk(('valu_w', r), 2)
                if rl:
                    chk(('valu_w', r), 1)
                if not ins.mn.startswith(TRANS):
                    chk(('trans_w', r), 1)
                chk(('opsel_w', r), 1)
            else:
                chk(('valu_sw', r), 4 if ins.mn.startswith(('v_readlane', 'v_writelane')) else 2)
    if k in ('ds', 'vmem'):
        for r in ins.w:
            chk(('st_data', r), 1)
    if k == 'vmem':
        for r in ins.r:
            if r[0] == 's':
                chk(('valu_sw', r), 5)
        if ins.lds_dma:
            chk(('m0_w',), 1)
    if k in ('salu', 'smem'):
        for r in ins.r:
            chk(('valu_sw', r), 1)
    return req


def step(ins, st):
    n = ins.states
    if n:
        st = {k: v + n for k, v in st.items() if v + n < MAXAGE}
    else:
        return st
    k = ins.kind
    if k == 'mfma':
        for r in ins.w:
            for p in P_IDX:
                st.pop(('mfma_w', r, p), None)
            st[('mfma_w', r, ins.passes)] = 0
        st[('mfma_d', tuple(ins.w), ins.mn)] = 0
        for r in ins.srcC:
            st[('mfma_c', r, ins.passes)] = 0
    elif k == 'valu':
        for r in ins.w:
            if r[0] in 'va':
                st[('valu_w', r)] = 0
                if ins.mn.startswith(TRANS):
                    st[('trans_w', r)] = 0
                else:
                    st.pop(('trans_w', r), None)
                if ins.opsel:
                    st[('opsel_w', r)] = 0
            else:
                st[('valu_sw', r)] = 0
    elif k == 'vmem':
        for r in ins.store_data:
            st[('st_data', r)] = 0
    elif k == 'salu':
        if ('s', 'm0') in ins.w:
            st[('m0_w',)] = 0
    return st


def merge(a, b):
    if a is None:
        return dict(b), True
    ch = False
    for k, v in b.items():
        if k not in a or v < a[k]:
            a[k] = v
            ch = True
    return a, ch


def fix_hazards(lines, verbose=False):
    ins = [Ins(l) for l in lines]
    cur = None
    keep = []
    for x in ins:
        if x.kind == 'dir' and x.text.startswith('.pad'):
            cur = x.text[4:].strip() or None
            continue
        x.pad = cur
        keep.append(x)
    ins = keep
    total = 0
    for _round in range(50):
        labels = {x.label: i for i, x in enumerate(ins) if x.kind == 'label'}
        instate = {0: {}}
        work = [0]
        viol = {}
        while work:
            i = work.pop()
            st = dict(instate[i])
            first = True
            while i < len(ins):
                x = ins[i]
                if x.kind == 'label' and not first:
                    new, ch = merge(instate.get(i), st)
                    instate[i] = new
                    if ch:
                        work.append(i)
                    break
                first = False
                q = need(x, st)
                if q:
                    viol[i] = max(viol.get(i, 0), q)
                    st = {k: v + q for k, v in st.items() if v + q < MAXAGE}
                st = step(x, st)
                if x.kind == 'end':
                    break
                if x.kind == 'branch':
                    t = labels.get(x.target)
                    if t is None:
                        raise ValueError('unknown label ' + x.target)
                    new, ch = merge(instate.get(t), st)
                    instate[t] = new
                    if ch:
                        work.append(t)
                    if x.mn == 's_branch':
                        break
                i += 1
        if not viol:
            break
        out = []
        for i, x in enumerate(ins):
            if i in viol:
                q = viol[i]
                total += q
                if verbose:
                    print('nop %d before: %s' % (q, x.text))
                while q > 0:
                    if x.pad:
                        y = Ins(x.pad)
                        q -= 1
                    else:
                        c = min(q, 16)
                        y = Ins('s_nop %d' % (c - 1))
                        q -= c
                    y.pad = x.pad
                    out.append(y)
            out.append(x)
        ins = out
    else:
        raise RuntimeError('hazard pass did not converge')
    return ins, total


def check_waits(ins):
    vm, lg = [], []
    probs = []
    for x in ins:
        if x.kind in ('label', 'dir', 'nop'):
            continue
        if x.kind == 'wait':
            if 'vmcnt' in x.cnt:
                n = x.cnt['vmcnt']
                vm = vm[len(vm) - n:] if n < len(vm) else vm
                if n == 0:
                    vm = []
            if 'lgkmcnt' in x.cnt:
                n = x.cnt['lgkmcnt']
                lg = lg[len(lg) - n:] if n < len(lg) else lg
                if n == 0:
                    lg = []
            continue
        if x.kind == 'end' or (x.kind == 'branch' and x.mn == 's_branch'):
            vm, lg = [], []
            continue
        touched = set(x.r) | (set(x.w) if x.kind not in ('vmem', 'ds') else set())
        for q, nm in ((vm, 'vm'), (lg, 'lgkm')):
            for regs in q:
                if touched & regs:
                    probs.append('%s outstanding: %s' % (nm, x.text))
        if x.kind == 'vmem':
            for regs in lg:
                if set(x.w) & regs:
                    probs.append('lgkm outstanding (WAW): %s' % x.text)
            vm.append(set(x.w))
        elif x.kind in ('ds', 'smem'):
            for regs in vm:
                if set(x.w) & regs:
                    probs.append('vm outstanding (WAW): %s' % x.text)
            lg.append(set(x.w))
    return probs


class Asm:
    def __init__(self):
        self.lines = []
        self.uid = 0

    def __call__(self, s):
        for l in s.split('\n'):
            l = l.strip()
            if l:
                self.lines.append(l)

    def label(self, name):
        self.lines.append(name + ':')

    def newlabel(self, p='L'):
        self.uid += 1
        return '%s_%d' % (p, self.uid)

    def finalize(self, verbose=False, waits=True):
        ins, total = fix_hazards(self.lines, verbose)
        if waits:
            for p in check_waits(ins):
                print('WAITCHECK:', p)
        return '\n'.join(('' if x.kind in ('label',) else '  ') + x.text for x in ins) + '\n'


def v(i, n=1):
    return 'v%d' % i if n == 1 else 'v[%d:%d]' % (i, i + n - 1)


def a(i, n=1):
    return 'a%d' % i if n == 1 else 'a[%d:%d]' % (i, i + n - 1)


def s(i, n=1):
    return 's%d' % i if n == 1 else 's[%d:%d]' % (i, i + n - 1)


class Alloc:
    def __init__(self, start, end):
        self.p, self.end = start, end
        self.names = {}

    def __call__(self, n=1, align=None, name=None):
        al = align or (2 if n >= 2 else 1)
        self.p = (self.p + al - 1) // al * al
        r = self.p
        self.p += n
        if self.p > self.end:
            raise RuntimeError('out of registers')
        return r
```

```python
import struct
from asmlib import Asm, Alloc, v, a, s

WS_BYTES = 268435456
OOB = 0x80000000
SEG_H = 12288
SEG_ALL = 32 * SEG_H

KX_OFF = 0x0000000
VX_OFF = 0x1800000
S_OFF = 0x3000000
S_SH = 17
VM_OFF = 0x3080000
VM_SH = 17
M_OFF = 0x3100000
M_SH = 16
PROBE_OFF = 0x3180000
FL_OFF = 0x31C0000
FL_USED = 0x4400
FL_KV = FL_OFF
FL_CH = FL_OFF + 0x1000
FL_QA = FL_OFF + 0x2000
FL_WO = FL_OFF + 0x3000
FL_MISC = FL_OFF + 0x4000
G_OFF = 0x3200000
Z_OFF = 0x3300000
MLOG_OFF = 0x3800000
TRACE_OFF = 0x38F0000
TL_OFF = 0x3900000
KM_OFF = 0x4000000
VMO_OFF = 0x4800000
CF_OFF = 0x5000000
O_OFF = 0x8000000
AP_OFF = 0x9800000

DBG_GO = 48
DBG_FAIL = 60

SCALE_LOG2E = (192 ** -0.5) * 1.4426950408889634


def f32bits(x):
    return struct.unpack('<I', struct.pack('<f', x))[0]


def srd(A, d, base, nbytes):
    A(f's_mov_b32 {s(d)}, {s(base)}')
    A(f's_mov_b32 {s(d+1)}, {s(base+1)}')
    A(f's_mov_b32 {s(d+2)}, {nbytes}')
    A(f's_mov_b32 {s(d+3)}, 0x20000')


def delay(A, cyc):
    q = cyc // 4
    while q > 0:
        c = min(q, 16)
        A(f's_nop {c-1}')
        q -= c


def sleep(A, cyc):
    if cyc >= 64:
        A(f's_sleep {cyc // 64}')
    delay(A, cyc % 64)


def c_base(A, dst, step, par, t1, t2):
    A(f's_mul_i32 {s(t1)}, {s(step)}, 0x5556')
    A(f's_lshr_b32 {s(t1)}, {s(t1)}, 16')
    A(f's_mul_i32 {s(t2)}, {s(t1)}, 3')
    A(f's_sub_u32 {s(t2)}, {s(step)}, {s(t2)}')
    A(f's_mul_i32 {s(t2)}, {s(t2)}, 655360')
    A(f's_lshl_b32 {s(dst)}, {s(t1)}, 21')
    A(f's_add_u32 {s(dst)}, {s(dst)}, {s(t2)}')
    A(f's_xor_b32 {s(t1)}, {s(t1)}, {s(par)}')
    A(f's_and_b32 {s(t1)}, {s(t1)}, 1')
    A(f's_lshl_b32 {s(t1)}, {s(t1)}, 13')
    A(f's_add_u32 {s(dst)}, {s(dst)}, {s(t1)}')
    A(f's_add_u32 {s(dst)}, {s(dst)}, {CF_OFF}')


class Env:
    sWS = 4
    sDBG = 8
    sWave = 12
    sRole = 13
    sPar = 14
    sCnt = 15
    sFree = 16


def wait_word(A, name, vtmp, vaddr, srdreg, soff, cmp, sval, scnt, fail, limit=0x40000, slp=2):
    A(f's_mov_b32 {s(scnt)}, 0')
    A.label(name)
    A(f'buffer_load_dword {v(vtmp)}, {v(vaddr)}, {s(srdreg,4)}, {soff} offen sc1')
    A('s_waitcnt vmcnt(0)')
    A(f'v_cmp_{cmp}_u32 vcc, {sval}, {v(vtmp)}')
    A(f's_cbranch_vccz {name}_ok')
    if slp:
        A(f's_sleep {slp}')
    A(f's_add_u32 {s(scnt)}, {s(scnt)}, 1')
    A(f's_cmp_lt_u32 {s(scnt)}, {limit}')
    A(f's_cbranch_scc1 {name}')
    A(f's_branch {fail}')
    A.label(name + '_ok')


def wait_go(A, name, e, va, vb, fail):
    A(f'v_mov_b32 {v(va)}, {DBG_GO}')
    wait_word(A, name, vb, va, e.sDBG, 0, 'eq', 0, e.sCnt, fail)
    A(f'v_readfirstlane_b32 {s(e.sPar)}, {v(vb)}')
    A(f's_sub_u32 {s(e.sPar)}, {s(e.sPar)}, 1')


def stage_w192(A, e, sW, sH, sT, vt, wreg, pfx, lds0=0):
    vS = vt[0:3]; vRd = vt[3:6]; x, y = vt[6], vt[7]
    for i in range(3):
        A(f'v_and_b32 {v(x)}, 63, v0')
        A(f'v_add_u32 {v(x)}, {64*i}, {v(x)}')
        A(f'v_mul_u32_u24 {v(y)}, 2731, {v(x)}')
        A(f'v_lshrrev_b32 {v(y)}, 16, {v(y)}')
        A(f'v_mul_u32_u24 {v(vS[i])}, 24, {v(y)}')
        A(f'v_sub_u32 {v(x)}, {v(x)}, {v(vS[i])}')
        A(f'v_mul_u32_u24 {v(vS[i])}, 12288, {v(y)}')
        A(f'v_and_b32 {v(y)}, 2, {v(y)}')
        A(f's_and_b32 {s(sT[0])}, {s(e.sWave)}, 1')
        A(f's_lshl_b32 {s(sT[0])}, {s(sT[0])}, 2')
        A(f'v_or_b32 {v(y)}, {s(sT[0])}, {v(y)}')
        A(f'v_xor_b32 {v(x)}, {v(x)}, {v(y)}')
        A(f'v_lshl_add_u32 {v(vS[i])}, {v(x)}, 4, {v(vS[i])}')
    A(f'v_bfe_u32 {v(x)}, v0, 3, 1')
    A(f'v_bfe_u32 {v(y)}, v0, 4, 1')
    A(f'v_lshl_or_b32 {v(x)}, {v(y)}, 1, {v(x)}')
    for tl in range(3):
        A(f's_mul_i32 {s(sT[0])}, {s(e.sWave)}, 3')
        A(f's_add_u32 {s(sT[0])}, {s(sT[0])}, {tl}')
        A(f'v_xor_b32 {v(vRd[tl])}, {s(sT[0])}, {v(x)}')
        A(f'v_lshlrev_b32 {v(vRd[tl])}, 5, {v(vRd[tl])}')
    A(f'v_bfe_u32 {v(x)}, v0, 4, 2')
    A(f'v_bfe_u32 {v(y)}, v0, 2, 2')
    A(f'v_lshl_add_u32 {v(x)}, {v(x)}, 3, {v(y)}')
    A(f'v_mul_u32_u24 {v(x)}, 384, {v(x)}')
    A(f'v_and_b32 {v(y)}, 3, v0')
    A(f'v_lshl_add_u32 {v(x)}, {v(y)}, 3, {v(x)}')
    for tl in range(3):
        A(f'v_add3_u32 {v(vRd[tl])}, {v(vRd[tl])}, {v(x)}, {lds0}' if lds0 <= 64 else
          f'v_add_u32 {v(vRd[tl])}, {v(vRd[tl])}, {v(x)}')
        if lds0 > 64:
            A(f'v_add_u32 {v(vRd[tl])}, {lds0}, {v(vRd[tl])}')

    def issue(p):
        A(f's_mul_i32 {s(sT[0])}, {s(e.sWave)}, {8 * 12288}')
        A(f's_mul_i32 {s(sT[1])}, {s(sH)}, 384')
        A(f's_add_u32 {s(sT[0])}, {s(sT[0])}, {s(sT[1])}')
        A(f's_add_u32 {s(sT[0])}, {s(sT[0])}, {p * 160 * 12288}')
        A(f's_mul_i32 {s(sT[1])}, {s(e.sWave)}, 3072')
        A(f's_add_u32 {s(sT[1])}, {s(sT[1])}, {lds0 + (p & 1) * 61440}')
        for b in range(5):
            for i in range(3):
                A(f's_add_u32 m0, {s(sT[1])}, {b * 12288 + i * 1024}')
                A('s_nop 0')
                A(f'buffer_load_dwordx4 {v(vS[i])}, {s(sW,4)}, {s(sT[0])} offen lds')
            if b < 4:
                A(f's_add_u32 {s(sT[0])}, {s(sT[0])}, {32 * 12288}')
    issue(0)
    issue(1)
    for p in range(4):
        A(f's_waitcnt vmcnt({15 if p < 3 else 0})')
        A('s_barrier')
        for t in range(5):
            for tl in range(3):
                for hf in range(2):
                    off = t * 12288 + hf * 1536
                    A(f'ds_read_b64_tr_b16 {wreg(tl, 5*p + t, hf)}, {v(vRd[tl])} offset:{off}')
            A('s_waitcnt lgkmcnt(6)')
        for tl in range(3):
            A(f'v_{"add" if p % 2 == 0 else "subrev"}_u32 {v(vRd[tl])}, 61440, {v(vRd[tl])}')
        A('s_waitcnt lgkmcnt(0)')
        A('s_barrier')
        if p + 2 < 4:
            issue(p + 2)


def x_consts(A, e, vSrc, vRd, x, y, sT):
    A(f's_and_b32 {s(sT)}, {s(e.sWave)}, 1')
    A(f's_lshl_b32 {s(sT)}, {s(sT)}, 3')
    for i in range(10):
        A(f'v_and_b32 {v(x)}, 63, v0')
        A(f'v_add_u32 {v(x)}, {64*i}, {v(x)}')
        A(f'v_mul_u32_u24 {v(y)}, 820, {v(x)}')
        A(f'v_lshrrev_b32 {v(y)}, 16, {v(y)}')
        A(f'v_mul_u32_u24 {v(vSrc+i)}, 80, {v(y)}')
        A(f'v_sub_u32 {v(x)}, {v(x)}, {v(vSrc+i)}')
        A(f'v_mul_u32_u24 {v(vSrc+i)}, 1280, {v(y)}')
        A(f'v_or_b32 {v(y)}, {s(sT)}, {v(y)}')
        A(f'v_xor_b32 {v(x)}, {v(x)}, {v(y)}')
        A(f'v_lshl_add_u32 {v(vSrc+i)}, {v(x)}, 4, {v(vSrc+i)}')
    A(f'v_and_b32 {v(y)}, 15, v0')
    for q in range(4):
        A(f'v_bfe_u32 {v(x)}, v0, 4, 2')
        A(f'v_add_u32 {v(x)}, {4*q}, {v(x)}')
        A(f'v_xor_b32 {v(x)}, {v(x)}, {v(y)}')
        A(f'v_lshlrev_b32 {v(x)}, 4, {v(x)}')
        A(f'v_mul_u32_u24 {v(vRd+q)}, 1280, {v(y)}')
        A(f'v_add_u32 {v(vRd+q)}, {v(vRd+q)}, {v(x)}')


def x_dma(vSrc, sX, sSrc, sDst):
    out = []
    for i in range(10):
        out.append([f's_add_u32 m0, {s(sDst)}, {1024 * i}', 's_nop 0',
                    f'buffer_load_dwordx4 {v(vSrc+i)}, {s(sX,4)}, {s(sSrc)} offen lds'])
    return out


def x_read(dst, vRd, t, xt, buf):
    return f'ds_read_b128 {v(dst,4)}, {v(vRd + (t & 3))} offset:{buf + xt * 20480 + (t >> 2) * 256}'
```

```python
from common import *
import common

LDS_M = 0
LDS_T = 10240
LDS_O = LDS_T + 3072
LDS_S = LDS_O + 3072
LDS_MISC = LDS_S + 4096
LDS_STG = LDS_MISC + 1024
LDS_DUMP = 24576
LDS_KV = 32768


def gen_chain(A, e, sSlow, fail='L_fail', done='L_exit', dM=1000, dC=400, dS=120, dV=160, gap=60, gapS=80, fP=3, n1=2, n2=2,
              log=False, cnt=False, cyc=False, tl=False, both=True, kvfix=False):
    warm, solo, pub = True, False, True
    sWS, sDBG, sWave, sPar, sCnt = e.sWS, e.sDBG, e.sWave, e.sPar, e.sCnt
    SA = Alloc(max(e.sFree, sSlow + 1), 102)
    sW = SA(4, 4)
    sPtr = SA(22 if cyc else 12, 4)
    sAcc = SA(4, 4)
    sRank = SA(); sH = SA(); sJ = SA(); sXl = SA()
    sStep = SA(); sS = SA(); sVM = SA(); sC = SA(); sKX = SA(); sVX = SA(); sMn = SA()
    sSp = SA(); sVMp = SA(); sMp = SA(); sLog = SA()
    sSg = SA(); sHS = SA(); sKVb = SA(); sKb = SA(); sRt = SA(); sVMc = SA(); sMa = SA(); sMb = SA(); sMx = SA(); sL5 = SA()
    sKM = SA(); sVMo = SA(); sL0 = SA(); sL1 = SA(); sL2 = SA(); sW1 = SA(); sRdy = SA(); sFlKV = SA(); sFlCh = SA()
    sT0 = SA(); sT1 = SA(); sT2 = SA(); sT3 = SA(); sScale = SA(); sRed = SA()
    sExN8 = SA(2, 2)
    sTm = SA(2, 2); sTm2 = SA(2, 2)
    sTr = sW
    assert SA.p <= 90 or cyc, SA.p

    VA = Alloc(1, 176)
    vLA = VA(); vTW = VA(); vTR = VA()
    vSst = VA(); vSpo = VA(); vL4 = VA(); vCan = VA(); vVMst = VA(); vVMld = VA(); vKVrd = VA(); vKrd = VA()
    vOW = VA(); vCst = VA(); vCld = VA(); vCld2 = VA(); vMpo = VA(); vKMst = VA(); vMst = VA(); vIdx = VA(); vDum = VA()
    vt = [VA() for _ in range(6)]
    vSel = VA(8); vOnes = VA(4); vE = VA(4)
    vAf = VA(40)
    vQ = VA(4); vK = VA(4); vV = VA(4)
    vKX = VA(8); vVX = VA(12)
    vTp = VA(2); vVp = VA(2)
    vTr = VA(8)
    vP = VA(24)
    vD = VA(8); vOR = VA()
    vVm = VA(8); vPm = VA(4)
    vO = vAf + 8; vPx = vAf + 20
    vOf = vP
    vL = vKX; vN = vKX + 1; vG = vKX + 2
    vR = vAf
    WO_V = 176
    DUM = f'v_mov_b32 {v(vDum)}, 0'

    def wreg(kind, t):
        return a(80 * kind + 8 * t, 8)

    def woreg(u, t):
        i = (u * 6 + t) * 8
        return a(240 + i, 8) if i < 16 else v(WO_V + i - 16, 8)

    def woreg_half(u, t, q):
        i = (u * 6 + t) * 8 + 2 * q
        return a(240 + i, 2) if i < 16 else v(WO_V + i - 16, 2)

    def fill(n):
        for _ in range(n):
            A(DUM)

    def delay(cyc_):
        common.delay(A, cyc_)

    def sleep(cyc_):
        common.sleep(A, cyc_)

    t0, t1, t2, t3, t4, t5 = vt
    A(f's_load_dwordx2 {s(sPtr,2)}, s[0:1], 8')
    A(f's_load_dwordx8 {s(sPtr+4,8)}, s[0:1], 16')
    A(f'v_and_b32 {v(vL)}, 63, v0')
    A(f'v_and_b32 {v(vN)}, 15, v0')
    A(f'v_bfe_u32 {v(vG)}, v0, 4, 2')
    A(f's_mul_i32 {s(sXl)}, {s(e.sRole)}, 2731')
    A(f's_lshr_b32 {s(sXl)}, {s(sXl)}, 16')
    A(f's_mul_i32 {s(sT0)}, {s(sXl)}, 24')
    A(f's_sub_u32 {s(sRank)}, {s(e.sRole)}, {s(sT0)}')
    A(f's_mul_i32 {s(sH)}, {s(e.sRole)}, 0x5556')
    A(f's_lshr_b32 {s(sH)}, {s(sH)}, 16')
    A(f's_mul_i32 {s(sT1)}, {s(sH)}, 3')
    A(f's_sub_u32 {s(sJ)}, {s(e.sRole)}, {s(sT1)}')
    A(f's_lshl_b32 {s(sRed)}, {s(sRank)}, 1')
    A(f's_and_b32 {s(sT0)}, {s(sWave)}, 1')
    A(f's_add_u32 {s(sRed)}, {s(sRed)}, {s(sT0)}')
    A(f's_lshl_b32 {s(sFlKV)}, {s(sH)}, 7')
    A(f's_lshl_b32 {s(sT0)}, {s(sJ)}, 2')
    A(f's_add_u32 {s(sFlCh)}, {s(sFlKV)}, {s(sT0)}')
    A(f's_add_u32 {s(sFlCh)}, {s(sFlCh)}, {FL_CH}')
    A(f's_add_u32 {s(sFlKV)}, {s(sFlKV)}, {FL_KV}')
    A('s_waitcnt lgkmcnt(0)')
    A(f's_or_b32 {s(sT0)}, {s(e.sRole)}, {s(sWave)}')
    A(f's_cmp_lg_u32 {s(sT0)}, 0')
    A('s_cbranch_scc1 L_noprobe')
    A(f'v_lshlrev_b32 {v(t1)}, 4, {v(vL)}')
    for i in range(4):
        A(f'v_mov_b32 {v(vOnes+i)}, 0')
    for i in range(common.FL_USED // 1024):
        A(f's_mov_b32 {s(sT0)}, {FL_OFF + 1024 * i}')
        A(f'buffer_store_dwordx4 {v(vOnes,4)}, {v(t1)}, {s(sWS,4)}, {s(sT0)} offen sc1')
    A('s_mov_b64 exec, 1')
    A(f's_mov_b32 {s(sT1)}, -1')
    A(f's_mov_b32 {s(sT2)}, -1')
    for r in range(4):
        for k in range(2):
            A(f'v_mov_b32 {v(t1)}, {PROBE_OFF + 8192 * k}')
            A(f'v_mov_b32 {v(t0)}, 0')
            A('s_waitcnt vmcnt(0)')
            A(f's_memtime {s(sTm,2)}')
            A('s_waitcnt lgkmcnt(0)')
            A(f'buffer_atomic_add {v(t0)}, {v(t1)}, {s(sWS,4)}, 0 offen sc0 sc1')
            A('s_waitcnt vmcnt(0)')
            A(f's_memtime {s(sTm2,2)}')
            A('s_waitcnt lgkmcnt(0)')
            A(f's_sub_u32 {s(sT3)}, {s(sTm2)}, {s(sTm)}')
            A(f's_min_u32 {s(sT1 + k)}, {s(sT1 + k)}, {s(sT3)}')
    A(f's_cmp_lt_u32 {s(sT1)}, {s(sT2)}')
    A(f's_cselect_b32 {s(sT0)}, 1, 2')
    A(f'v_mov_b32 {v(t0)}, {s(sT0)}')
    A(f'v_mov_b32 {v(t1)}, {DBG_GO}')
    A(f'buffer_store_dword {v(t0)}, {v(t1)}, {s(sDBG,4)}, 0 offen sc1')
    A('s_mov_b64 exec, -1')
    A.label('L_noprobe')

    A(f'v_lshlrev_b32 {v(vLA)}, 4, {v(vL)}')
    A(f's_lshl_b32 {s(sL0)}, {s(sWave)}, 10')
    A(f's_add_u32 {s(sL1)}, {s(sL0)}, 4096')
    A(f's_and_b32 {s(sW1)}, {s(sWave)}, 1')
    A(f's_lshl_b32 {s(sW1)}, {s(sW1)}, 10')
    A(f's_add_u32 {s(sL2)}, {s(sW1)}, 8192')
    A(f'v_mov_b32 {v(t0)}, 0x44444444')
    A(f'v_mov_b32 {v(t1)}, 0xeeeeeeee')
    A(f'v_cmp_gt_u32 vcc, 8, {v(vN)}')
    A(f's_mov_b64 {s(sExN8,2)}, vcc')
    A(f'v_cndmask_b32 {v(vIdx)}, {v(t1)}, {v(t0)}, vcc')
    A(f's_lshl_b32 {s(sT0)}, {s(sWave)}, 4')
    A(f'v_add_u32 {v(t0)}, {s(sT0)}, {v(vN)}')
    A(f'v_lshlrev_b32 {v(t1)}, 5, {v(t0)}')
    A(f'v_and_b32 {v(t2)}, 1, {v(vG)}')
    A(f'v_lshl_add_u32 {v(t1)}, {v(t2)}, 3, {v(t1)}')
    A(f'v_lshrrev_b32 {v(t2)}, 1, {v(vG)}')
    A(f'v_lshl_add_u32 {v(t1)}, {v(t2)}, 2, {v(t1)}')
    A(f'v_add_u32 {v(vTW)}, {LDS_T}, {v(t1)}')
    A(f'v_lshrrev_b32 {v(t2)}, 2, {v(vN)}')
    A(f'v_and_b32 {v(t3)}, 3, {v(vN)}')
    A(f'v_lshlrev_b32 {v(t0)}, 7, {v(vG)}')
    A(f'v_lshl_add_u32 {v(t0)}, {v(t2)}, 5, {v(t0)}')
    A(f'v_lshl_add_u32 {v(t0)}, {v(t3)}, 3, {v(t0)}')
    A(f'v_add_u32 {v(vTR)}, {LDS_T}, {v(t0)}')
    A(f's_mul_i32 {s(sT0)}, {s(sH)}, 3840')
    A(f's_mul_i32 {s(sT1)}, {s(sJ)}, 1280')
    A(f's_add_u32 {s(sT1)}, {s(sT1)}, {s(sT0)}')
    A(f'v_mov_b32 {v(t4)}, {OOB}')
    A(f'v_add_u32 {v(t0)}, {s(sT1)}, {v(vLA)}')
    A(f'v_add_u32 {v(t1)}, 128, {v(t0)}')
    A(f'v_cndmask_b32 {v(t0)}, {v(t4)}, {v(t0)}, {s(sExN8,2)}')
    A(f'v_cndmask_b32 {v(t1)}, {v(t4)}, {v(t1)}, {s(sExN8,2)}')
    A(f'v_lshlrev_b32 {v(t5)}, 5, {v(vN)}')
    A(f'v_lshl_add_u32 {v(t5)}, {v(vG)}, 4, {v(t5)}')
    A(f's_add_u32 {s(sT2)}, {s(sT1)}, {1024 - 256}')
    A(f'v_add_u32 {v(t5)}, {s(sT2)}, {v(t5)}')
    A(f'v_cmp_gt_u32 vcc, 2, {v(vG)}')
    A(f'v_cndmask_b32 {v(t5)}, {v(t4)}, {v(t5)}, vcc')
    A(f'v_cndmask_b32 {v(t5)}, {v(t5)}, {v(t4)}, {s(sExN8,2)}')
    for wv, r in ((1, t0), (2, t1)):
        A(f's_cmp_eq_u32 {s(sWave)}, {wv}')
        A(f's_cselect_b64 vcc, -1, 0')
        A(f'v_cndmask_b32 {v(t5)}, {v(t5)}, {v(r)}, vcc')
    A(f'v_mov_b32 {v(vSst)}, {v(t5)}')
    A(f's_mov_b32 {s(sHS)}, {s(sT0)}')
    A(f'v_lshlrev_b32 {v(vL4)}, 2, {v(vL)}')
    A(f'v_add_u32 {v(vSpo)}, {s(sT1)}, {v(vLA)}')
    A(f'v_and_b32 {v(t0)}, 1, {v(vG)}')
    A(f'v_lshrrev_b32 {v(t1)}, 1, {v(vG)}')
    A(f'v_lshrrev_b32 {v(t3)}, 3, {v(vN)}')
    A(f's_mul_i32 {s(sT0)}, {s(sH)}, 12')
    A(f's_lshl_b32 {s(sT1)}, {s(sJ)}, 2')
    A(f's_add_u32 {s(sVMc)}, {s(sT1)}, {s(sT0)}')
    A(f's_lshl_b32 {s(sVMc)}, {s(sVMc)}, 8')
    A(f's_add_u32 {s(sT1)}, {s(sT1)}, {s(sWave)}')
    A(f's_add_u32 {s(sT2)}, {s(sT0)}, {s(sT1)}')
    A(f's_lshl_b32 {s(sT2)}, {s(sT2)}, 8')
    A(f'v_lshl_add_u32 {v(t5)}, {v(t0)}, 1, {v(t1)}')
    A(f'v_lshlrev_b32 {v(t2)}, 6, {v(t5)}')
    A(f'v_lshl_add_u32 {v(t2)}, {v(vN)}, 2, {v(t2)}')
    A(f'v_add_u32 {v(vVMst)}, {s(sT2)}, {v(t2)}')
    A(f'v_mul_u32_u24 {v(t5)}, 12, {v(t5)}')
    A(f'v_add_u32 {v(t5)}, {s(sT1)}, {v(t5)}')
    A(f'v_cmp_gt_u32 vcc, 40, {v(t5)}')
    A(f'v_lshlrev_b32 {v(t5)}, 14, {v(t5)}')
    A(f'v_lshl_add_u32 {v(t5)}, {v(t3)}, 12, {v(t5)}')
    A(f'v_and_b32 {v(t2)}, 7, {v(vN)}')
    A(f'v_lshl_add_u32 {v(t5)}, {v(t2)}, 4, {v(t5)}')
    A(f's_lshl_b32 {s(sT2)}, {s(sH)}, 7')
    A(f'v_add_u32 {v(t5)}, {s(sT2)}, {v(t5)}')
    A(f'v_cndmask_b32 {v(vCst)}, {v(t4)}, {v(t5)}, vcc')
    A(f's_mul_i32 {s(sT2)}, {s(sWave)}, 3')
    A(f's_add_u32 {s(sT3)}, {s(sT2)}, {s(sT0)}')
    A(f's_lshl_b32 {s(sT3)}, {s(sT3)}, 8')
    A(f'v_lshlrev_b32 {v(t5)}, 2, {v(vL)}')
    A(f'v_add_u32 {v(vVMld)}, {s(sT3)}, {v(t5)}')
    A(f's_lshl_b32 {s(sT2)}, {s(sT2)}, 10')
    A(f's_add_u32 {s(sT2)}, {s(sT2)}, {LDS_KV + 4096}')
    A(f'v_add_u32 {v(vKVrd)}, {s(sT2)}, {v(vLA)}')
    A(f's_add_u32 {s(sT2)}, {s(sWave)}, 1')
    A(f's_and_b32 {s(sT2)}, {s(sT2)}, 1')
    A(f's_lshl_b32 {s(sT2)}, {s(sT2)}, 3')
    A(f's_add_u32 {s(sT2)}, {s(sT2)}, {LDS_KV}')
    A(f'v_add_u32 {v(vKrd)}, {s(sT2)}, {v(vLA)}')
    A(f's_mul_i32 {s(sKX)}, {s(sH)}, 12288')
    A(f's_lshl_b32 {s(sT3)}, {s(sJ)}, 12')
    A(f's_add_u32 {s(sKX)}, {s(sKX)}, {s(sT3)}')
    A(f's_add_u32 {s(sKX)}, {s(sKX)}, {s(sL0)}')
    A(f's_add_u32 {s(sKX)}, {s(sKX)}, {KX_OFF}')
    A(f's_add_u32 {s(sKb)}, {s(sL0)}, {LDS_KV}')
    A(f's_mul_i32 {s(sT3)}, {s(sL0)}, 3')
    A(f's_lshl_b32 {s(sVX)}, {s(sT0)}, 10')
    A(f's_add_u32 {s(sVX)}, {s(sVX)}, {s(sT3)}')
    A(f's_add_u32 {s(sVX)}, {s(sVX)}, {VX_OFF}')
    A(f's_add_u32 {s(sKVb)}, {s(sT3)}, {LDS_KV + 4096}')
    A(f's_mul_i32 {s(sT2)}, {s(sWave)}, 768')
    A(f's_add_u32 {s(sT2)}, {s(sT2)}, {LDS_O}')
    A(f'v_lshlrev_b32 {v(t5)}, 7, {v(t1)}')
    A(f'v_lshl_add_u32 {v(t5)}, {v(vN)}, 4, {v(t5)}')
    A(f'v_lshl_add_u32 {v(t5)}, {v(t0)}, 3, {v(t5)}')
    A(f'v_add_u32 {v(t5)}, {s(sT2)}, {v(t5)}')
    A(f'v_lshlrev_b32 {v(t2)}, 3, {v(vL)}')
    A(f'v_add_u32 {v(t2)}, {LDS_DUMP}, {v(t2)}')
    A(f'v_cndmask_b32 {v(vOW)}, {v(t2)}, {v(t5)}, {s(sExN8,2)}')
    A(f'v_and_b32 {v(t2)}, 7, {v(vN)}')
    A(f'v_lshlrev_b32 {v(t5)}, 7, {v(vG)}')
    A(f'v_lshl_add_u32 {v(t5)}, {v(t2)}, 4, {v(t5)}')
    A(f'v_add_u32 {v(vOR)}, {LDS_O}, {v(t5)}')
    A(f's_lshl_b32 {s(sT2)}, {s(sRed)}, 14')
    A(f'v_add_u32 {v(vCld)}, {s(sT2)}, {v(vLA)}')
    A(f'v_add_u32 {v(vCld2)}, 4096, {v(vCld)}')
    A(f's_lshl_b32 {s(sT2)}, {s(sRed)}, 8')
    A(f'v_lshlrev_b32 {v(t5)}, 4, {v(vN)}')
    A(f'v_lshl_add_u32 {v(t5)}, {v(t0)}, 3, {v(t5)}')
    A(f'v_lshl_add_u32 {v(t5)}, {v(t1)}, 2, {v(t5)}')
    A(f'v_add_u32 {v(vMst)}, {s(sT2)}, {v(t5)}')
    A(f's_lshl_b32 {s(sT2)}, {s(sRank)}, 9')
    A(f'v_add_u32 {v(t5)}, {s(sT2)}, {v(vLA)}')
    A(f'v_cmp_gt_u32 vcc, 32, {v(vL)}')
    A(f'v_cndmask_b32 {v(t5)}, {v(t4)}, {v(t5)}, vcc')
    A(f's_cmp_ge_u32 {s(sRank)}, 20')
    A(f's_cselect_b64 vcc, -1, 0')
    A(f'v_cndmask_b32 {v(vMpo)}, {v(t5)}, {v(t4)}, vcc')
    A(f's_mul_i32 {s(sL5)}, {s(sWave)}, 5120')
    A(f'v_min_u32 {v(t5)}, 39, {v(vL)}')
    A(f'v_lshlrev_b32 {v(t5)}, 7, {v(t5)}')
    A(f'v_and_b32 {v(t2)}, 3, {v(vL)}')
    A(f'v_lshl_add_u32 {v(t5)}, {v(t2)}, 4, {v(t5)}')
    A(f'v_add_u32 {v(vCan)}, {s(sL5)}, {v(t5)}')
    A(f's_mul_i32 {s(sT2)}, {s(sH)}, 3072')
    A(f's_lshl_b32 {s(sT3)}, {s(sJ)}, 10')
    A(f's_add_u32 {s(sT2)}, {s(sT2)}, {s(sT3)}')
    A(f'v_and_b32 {v(t2)}, 7, {v(vN)}')
    A(f'v_lshlrev_b32 {v(t5)}, 7, {v(vG)}')
    A(f'v_lshl_add_u32 {v(t5)}, {v(t2)}, 4, {v(t5)}')
    A(f'v_add_u32 {v(t5)}, {s(sT2)}, {v(t5)}')
    A(f'v_cndmask_b32 {v(vKMst)}, {v(t5)}, {v(t4)}, {s(sExN8,2)}')
    A(f's_mov_b32 {s(sKM)}, {KM_OFF}')
    A(f's_mov_b32 {s(sVMo)}, {VMO_OFF}')
    A(f'v_and_b32 {v(t5)}, 1, {v(vN)}')
    A(f'v_lshlrev_b32 {v(t5)}, 4, {v(t5)}')
    A(f'v_mov_b32 {v(t2)}, 0x3f80')
    A(f'v_lshlrev_b32 {v(t5)}, {v(t5)}, {v(t2)}')
    A(f'v_lshrrev_b32 {v(t2)}, 1, {v(vN)}')
    for i in range(8):
        A(f'v_cmp_eq_u32 vcc, {i}, {v(t2)}')
        A(f'v_cndmask_b32 {v(vSel+i)}, 0, {v(t5)}, vcc')
    for i in range(4):
        A(f'v_mov_b32 {v(vOnes+i)}, -1')
        A(f'v_mov_b32 {v(vE+i)}, 0x3f803f80')
    A(f's_mov_b32 {s(sScale)}, {f32bits(SCALE_LOG2E):#x}')
    for r in list(range(vVm, vVm + 8)) + list(range(vPm, vPm + 4)) + list(range(vQ, vQ + 12)) + list(range(vD, vD + 8)):
        A(f'v_mov_b32 {v(r)}, 0')

    vSrcW = vAf; vSrcO = vAf + 1; vRd = vAf + 2; vRdB = vAf + 3; vRdO = vAf + 4
    A(f's_and_b32 {s(sT0)}, {s(sWave)}, 1')
    A(f's_lshl_b32 {s(sT0)}, {s(sT0)}, 1')
    A(f'v_lshrrev_b32 {v(t2)}, 5, {v(vL)}')
    A(f'v_add_u32 {v(t2)}, {s(sT0)}, {v(t2)}')
    A(f'v_lshlrev_b32 {v(t2)}, 1, {v(t2)}')
    A(f'v_and_b32 {v(t3)}, 7, {v(vL)}')
    A(f'v_xor_b32 {v(t3)}, {v(t3)}, {v(t2)}')
    A(f'v_lshlrev_b32 {v(t3)}, 4, {v(t3)}')
    A(f'v_lshrrev_b32 {v(t2)}, 3, {v(vL)}')
    A(f's_mul_i32 {s(sT0)}, {s(sH)}, 384')
    A(f's_lshl_b32 {s(sT1)}, {s(sJ)}, 7')
    A(f's_add_u32 {s(sT0)}, {s(sT0)}, {s(sT1)}')
    A(f'v_mul_u32_u24 {v(t5)}, 12288, {v(t2)}')
    A(f'v_add3_u32 {v(vSrcW)}, {v(t5)}, {v(t3)}, {s(sT0)}')
    A(f's_mul_i32 {s(sT0)}, {s(sH)}, 245760')
    A(f's_add_u32 {s(sT0)}, {s(sT0)}, {s(sT1)}')
    A(f'v_mul_u32_u24 {v(t5)}, 1280, {v(t2)}')
    A(f'v_add3_u32 {v(vSrcO)}, {v(t5)}, {v(t3)}, {s(sT0)}')
    A(f'v_lshrrev_b32 {v(t2)}, 3, {v(vN)}')
    A(f'v_bfe_u32 {v(t3)}, {v(vN)}, 2, 1')
    A(f'v_lshlrev_b32 {v(t5)}, 4, {v(t1)}')
    A(f'v_lshl_add_u32 {v(t5)}, {v(t2)}, 3, {v(t5)}')
    A(f'v_lshl_add_u32 {v(t5)}, {v(t0)}, 2, {v(t5)}')
    A(f'v_add_u32 {v(t5)}, {v(t5)}, {v(t3)}')
    A(f'v_lshlrev_b32 {v(t5)}, 7, {v(t5)}')
    A(f'v_lshl_add_u32 {v(t2)}, {v(t2)}, 1, {v(t0)}')
    A(f'v_xor_b32 {v(t2)}, {s(sWave)}, {v(t2)}')
    A(f'v_lshl_add_u32 {v(t5)}, {v(t2)}, 5, {v(t5)}')
    A(f'v_and_b32 {v(t3)}, 3, {v(vN)}')
    A(f'v_lshl_add_u32 {v(vRd)}, {v(t3)}, 3, {v(t5)}')

    A(f'v_lshlrev_b32 {v(t5)}, 3, {v(t1)}')
    A(f'v_lshl_add_u32 {v(t5)}, {v(t0)}, 2, {v(t5)}')
    A(f'v_bfe_u32 {v(t2)}, {v(vN)}, 2, 1')
    A(f'v_add_u32 {v(t5)}, {v(t5)}, {v(t2)}')
    A(f'v_lshlrev_b32 {v(t5)}, 7, {v(t5)}')
    A(f'v_xor_b32 {v(t2)}, {s(sWave)}, {v(vG)}')
    A(f'v_lshl_add_u32 {v(t5)}, {v(t2)}, 5, {v(t5)}')
    A(f'v_lshl_add_u32 {v(t5)}, {v(t3)}, 3, {v(t5)}')
    A(f'v_lshrrev_b32 {v(t2)}, 3, {v(vN)}')
    A(f'v_mul_u32_u24 {v(t2)}, 12288, {v(t2)}')
    A(f'v_add_u32 {v(vRdO)}, {v(t5)}, {v(t2)}')

    phases = [('w', k, hf) for k in range(3) for hf in range(2)] + [('o', p_, hf) for p_ in range(2) for hf in range(2)]

    def issue(p):
        kind, x, hf = phases[p]
        buf = LDS_STG + (p % 3) * 40960
        if kind == 'w':
            if hf == 0:
                srd(A, sW, sPtr + 4 + 2 * x, 7864320)
            n, rowb, base, src = 10, 12288, hf * 320 * 12288, vSrcW
        else:
            if x == 0 and hf == 0:
                srd(A, sW, sPtr + 10, 7864320)
            n, rowb, base, src = 6, 1280, 2 * x * 384 + hf * 96 * 1280, vSrcO
        A(f's_mul_i32 {s(sT0)}, {s(sWave)}, {8 * rowb}')
        A(f's_add_u32 {s(sT0)}, {s(sT0)}, {base}')
        A(f's_add_u32 {s(sT1)}, {s(sL0)}, {buf}')
        for i in range(n):
            A(f's_mov_b32 m0, {s(sT1)}')
            A(f'buffer_load_dwordx4 {v(src)}, {s(sW,4)}, {s(sT0)} offen lds')
            if i + 1 < n:
                if kind == 'o' and i == 2:
                    A(f's_sub_u32 {s(sT0)}, {s(sT0)}, {64 * rowb - 384}')
                else:
                    A(f's_add_u32 {s(sT0)}, {s(sT0)}, {32 * rowb}')
                A(f's_add_u32 {s(sT1)}, {s(sT1)}, 4096')
        return n

    cn = [issue(0), issue(1), issue(2)]
    for p in range(len(phases)):
        kind, x, hf = phases[p]
        A(f's_waitcnt vmcnt({sum(cn[p + 1:])})')
        A('s_barrier')
        buf = LDS_STG + (p % 3) * 40960
        A(f'v_add_u32 {v(vRdB)}, {buf}, {v(vRd if kind == "w" else vRdO)}')
        for t in range(5 if kind == 'w' else 3):
            for q in range(4):
                if kind == 'w':
                    off = t * 8192 + (q >> 1) * 4096 + (q & 1) * 256
                    dst = a(80 * x + 8 * (5 * hf + t) + 2 * q, 2)
                else:
                    off = t * 4096 + (q >> 1) * 2048 + (q & 1) * 256
                    dst = woreg_half(x, 3 * hf + t, q)
                A(f'ds_read_b64_tr_b16 {dst}, {v(vRdB)} offset:{off}')
        A('s_waitcnt lgkmcnt(0)')
        if p + 3 < len(phases):
            A('s_barrier')
            cn.append(issue(p + 3))

    def timeout(loop, acc=None):
        if acc is not None and cnt:
            A(f's_add_u32 {s(sAcc+acc)}, {s(sAcc+acc)}, 1')
        A(f's_add_u32 {s(sCnt)}, {s(sCnt)}, 1')
        A(f's_cmp_lt_u32 {s(sCnt)}, 0x40000')
        A(f's_cbranch_scc1 {loop}')
        A(f's_branch {fail}')

    srd(A, sW, sPtr, 10240)
    A(f'v_and_b32 {v(t2)}, 7, {v(vL)}')
    A(f'v_mul_u32_u24 {v(t5)}, 1280, {v(t2)}')
    A(f'v_lshl_add_u32 {v(t5)}, {v(vG)}, 5, {v(t5)}')
    A(f'v_bfe_u32 {v(t2)}, {v(vL)}, 3, 1')
    A(f'v_lshl_add_u32 {v(t5)}, {v(t2)}, 4, {v(t5)}')
    for l in (sL0, sL1, sL2):
        A(f's_lshr_b32 {s(sT0)}, {s(l)}, 3')
        A(f's_mov_b32 m0, {s(l)}')
        A(f'buffer_load_dwordx4 {v(t5)}, {s(sW,4)}, {s(sT0)} offen lds')
    wait_go(A, 'L_ch_go', e, t0, t1, fail)
    e.mode(A, sSlow, t0, t1, t2, sT0, fail)
    A(f's_mul_i32 {s(sMx)}, {s(sXl)}, 10240')
    A(f's_add_u32 {s(sMx)}, {s(sMx)}, {M_OFF}')
    for k_ in range(4):
        A(f's_mov_b32 {s(sT0)}, {S_OFF + (k_ << S_SH)}')
        A(f's_mov_b32 {s(sT1)}, {VM_OFF + (k_ << VM_SH)}')
        A(f's_add_u32 {s(sT2)}, {s(sMx)}, {k_ << M_SH}')
        A(f'buffer_load_dword {v(t0)}, {v(vSst)}, {s(sWS,4)}, {s(sT0)} offen sc1')
        A(f'buffer_load_dword {v(t1)}, {v(vVMst)}, {s(sWS,4)}, {s(sT1)} offen sc1')
        A(f'buffer_load_dword {v(t2)}, {v(vMpo)}, {s(sWS,4)}, {s(sT2)} offen sc1')
    A('s_waitcnt vmcnt(0)')
    for st_, lab in (('', 'L_ch_p0'), ('sc1', 'L_ch_p1')):
        if st_ == '':
            A(f's_cmp_lg_u32 {s(sSlow)}, 0')
            A('s_cbranch_scc1 L_ch_p0')
        for k_ in range(4):
            A(f's_mov_b32 {s(sT0)}, {S_OFF + (k_ << S_SH)}')
            A(f's_mov_b32 {s(sT1)}, {VM_OFF + (k_ << VM_SH)}')
            A(f's_add_u32 {s(sT2)}, {s(sMx)}, {k_ << M_SH}')
            A(f'buffer_store_dwordx4 {v(vOnes,4)}, {v(vSst)}, {s(sWS,4)}, {s(sT0)} offen {st_}')
            A(f'buffer_store_dword {v(vOnes)}, {v(vVMst)}, {s(sWS,4)}, {s(sT1)} offen {st_}')
            A(f'buffer_store_dwordx4 {v(vOnes,4)}, {v(vMpo)}, {s(sWS,4)}, {s(sT2)} offen {st_}')
        if st_ == '':
            A('s_branch L_ch_p1')
        A.label(lab)

    def kv_adv():
        if kvfix:
            return
        A(f's_add_u32 {s(sKX)}, {s(sKX)}, {SEG_ALL}')
        A(f's_add_u32 {s(sVX)}, {s(sVX)}, {SEG_ALL}')

    def kv_dma_list():
        def ld(so, off):
            return f'buffer_load_dwordx4 {v(vLA)}, {s(sWS,4)}, {s(so)} offen offset:{off} sc1 lds'
        return [[f's_mov_b32 m0, {s(sKb)}', 's_nop 0', ld(sKX, 0)],
                [f's_mov_b32 m0, {s(sKVb)}', 's_nop 0', ld(sVX, 0)], [ld(sVX, 1024)], [ld(sVX, 2048)]]

    def kv_wait(name, need):
        A(f's_cmp_ge_u32 {s(sRdy)}, {need}')
        A(f's_cbranch_scc1 {name}_e')
        A('s_mov_b64 exec, 3')
        wait_word(A, name, t0, vL4, sWS, s(sFlKV), 'gt', need, sCnt, fail)
        A(f'v_readlane_b32 {s(sRdy)}, {v(t0)}, 0')
        A(f'v_readlane_b32 {s(sT0)}, {v(t0)}, 1')
        A('s_mov_b64 exec, -1')
        A(f's_min_u32 {s(sRdy)}, {s(sRdy)}, {s(sT0)}')
        A.label(name + '_e')

    A(f's_mov_b32 {s(sRdy)}, 0')
    kv_wait('L_ch_kv0', 2)
    A('s_barrier')
    for g_ in kv_dma_list():
        for x in g_:
            A(x)
    kv_adv()
    A(f's_mov_b32 {s(sStep)}, 0')
    A(f's_mov_b32 {s(sRt)}, 1')
    A(f'v_mov_b32 {v(t0)}, 0')
    A(f'ds_write_b32 {v(vL4)}, {v(t0)} offset:{LDS_MISC}')
    A(f's_mov_b32 {s(sLog)}, {MLOG_OFF + 10240}')

    def slots():
        A(f's_and_b32 {s(sT0)}, {s(sStep)}, 3')
        A(f's_xor_b32 {s(sT1)}, {s(sT0)}, 2')
        A(f's_add_u32 {s(sT2)}, {s(sStep)}, 1')
        A(f's_and_b32 {s(sT2)}, {s(sT2)}, 3')
        for dst, src, sh, base in ((sS, sT0, S_SH, S_OFF), (sSp, sT1, S_SH, S_OFF), (sVM, sT0, VM_SH, VM_OFF), (sVMp, sT1, VM_SH, VM_OFF),
                                   (sMp, sT1, M_SH, s(sMx)), (sMn, sT2, M_SH, s(sMx))):
            A(f's_lshl_b32 {s(dst)}, {s(src)}, {sh}')
            A(f's_add_u32 {s(dst)}, {s(dst)}, {base}')
        A(f's_add_u32 {s(sSg)}, {s(sS)}, {s(sHS)}')
        c_base(A, sC, sStep, sPar, sT1, sT2)

    def next_src():
        A(f's_add_u32 {s(sMa)}, {s(sMn)}, {s(sL5)}')
        A(f's_add_u32 {s(sMb)}, {s(sMa)}, 4096')
    slots()
    for i in range(4):
        A(f's_mov_b32 {s(sAcc+i)}, 0')
    if cyc:
        for i in range(24):
            A(f's_mov_b32 {s(sTr+i)}, 0')
    A('s_waitcnt vmcnt(0) lgkmcnt(0)')
    A('s_barrier')
    A(f's_cmp_lg_u32 {s(sWave)}, 0')
    A('s_cbranch_scc1 L_ch_rv')
    A('s_mov_b64 exec, 1')
    A(f'v_mov_b32 {v(t0)}, 1')
    A(f'v_mov_b32 {v(t1)}, {FL_MISC}')
    A(f'buffer_atomic_add {v(t0)}, {v(t1)}, {s(sWS,4)}, 0 offen sc1')
    A(f's_mov_b32 {s(sT0)}, 96')
    wait_word(A, 'L_ch_rvw', t0, t1, sWS, 0, 'gt', s(sT0), sCnt, fail, slp=1)
    A('s_mov_b64 exec, -1')
    A.label('L_ch_rv')
    if tl or cyc or cnt:
        A(f's_memrealtime {s(sTm2,2)}')
        A('s_waitcnt lgkmcnt(0)')
    if both:
        A(f's_cmp_lg_u32 {s(sSlow)}, 0')
        A('s_cbranch_scc1 S_b1')
    A('s_branch F_b1')

    def stamp(i, nxt=False):
        if tl and not nxt and i in (0, 3, 5, 7):
            A(f's_memrealtime {s(sPtr + 2 * (0, 3, 5, 7).index(i), 2)}')
        if cyc and not nxt and i in cyc:
            A(f's_memtime {s(sTr+2*cyc.index(i),2)}')

    def tldump():
        if not tl:
            return
        A(f's_lshl_b32 {s(sT0)}, {s(e.sRole)}, 2')
        A(f's_add_u32 {s(sT0)}, {s(sT0)}, {s(sWave)}')
        A(f's_mul_i32 {s(sT1)}, {s(sStep)}, 384')
        A(f's_add_u32 {s(sT0)}, {s(sT0)}, {s(sT1)}')
        A(f's_lshl_b32 {s(sT0)}, {s(sT0)}, 5')
        A(f's_add_u32 {s(sT0)}, {s(sT0)}, {TL_OFF}')
        A('s_waitcnt lgkmcnt(0)')
        for k_ in range(4):
            A(f'v_mov_b32 {v(vP+k_)}, {s(sPtr+2*k_)}')
            A(f'v_mov_b32 {v(vP+4+k_)}, {s(sAcc+k_)}')
        A(f'v_mov_b32 {v(t0)}, 0')
        A('s_mov_b64 exec, 1')
        A(f'buffer_store_dwordx4 {v(vP,4)}, {v(t0)}, {s(sWS,4)}, {s(sT0)} offen')
        A(f'buffer_store_dwordx4 {v(vP+4,4)}, {v(t0)}, {s(sWS,4)}, {s(sT0)} offen offset:16')
        A('s_mov_b64 exec, -1')

    def maxchain(regs, c0, c1):
        regs = list(regs)
        out = [f'v_max3_u32 {v(c0)}, {v(regs[0])}, {v(regs[1])}, {v(regs[2])}']
        rest = regs[3:]
        two = len(rest) >= 3
        if two:
            out.append(f'v_max3_u32 {v(c1)}, {v(rest[0])}, {v(rest[1])}, {v(rest[2])}')
            rest = rest[3:]
        k = 0
        while len(rest) >= 2:
            c = (c0, c1)[k & 1]
            out.append(f'v_max3_u32 {v(c)}, {v(c)}, {v(rest[0])}, {v(rest[1])}')
            rest = rest[2:]
            k += 1
        if rest:
            out.append(f'v_max3_u32 {v(c0)}, {v(c0)}, {v(c1)}, {v(rest[0])}')
        elif two:
            out.append(f'v_max_u32 {v(c0)}, {v(c0)}, {v(c1)}')
        out.append(f'v_cmp_eq_u32 vcc, -1, {v(c0)}')
        return out

    def k_pub():
        for u in range(2):
            A(f'buffer_store_dwordx4 {v(vTr+4*u,4)}, {v(vKMst)}, {s(sWS,4)}, {s(sKM)} offen offset:{512*u} sc1')
        A(f's_add_u32 {s(sKM)}, {s(sKM)}, {32 * 3072}')

    def steps(P, st_intra):
        A('.pad ' + DUM)
        A.label(P + '_b1')
        A('s_barrier')
        stamp(0); stamp(8, True)
        def rdA(t):
            return f'ds_read_b128 {v(vAf+4*t,4)}, {v(vLA)} offset:{LDS_M + 1024*t}'

        def sm(acc, kind, t):
            return f'v_smfmac_f32_16x16x64_bf16 {v(acc,4)}, {v(vAf+4*t,4)}, {wreg(kind,t)}, {v(vIdx)}'
        for t in range(3):
            A(rdA(t))
        kread = [f'ds_read_b64 {v(vKX+2*u,2)}, {v(vKrd)} offset:{1024*u}' for u in range(4)]
        extra = [None, None] + [f'ds_read_b128 {v(vVX+4*u,4)}, {v(vKVrd)} offset:{1024*u}' for u in range(3)]
        for t in range(7):
            A(f's_waitcnt lgkmcnt(2)')
            stamp('a%d' % t)
            A(sm(vQ, 0, t))
            A(rdA(t + 3))
            A(sm(vK, 1, t))
        tail = [(vQ, 0, 7), (vQ, 0, 8), (vQ, 0, 9), (vK, 1, 7), (vK, 1, 8), (vK, 1, 9)]
        for k_, (acc, kind, t) in enumerate(tail):
            if k_ < 3:
                A(f's_waitcnt lgkmcnt({2 - k_})')
            stamp('b%d' % k_)
            A(sm(acc, kind, t))
            if k_ in (3, 4):
                A(kread.pop(0)); A(kread.pop(0))
        A(f'v_permlane32_swap_b32 {v(vQ)}, {v(vQ+2)}')
        A(f'v_permlane32_swap_b32 {v(vQ+1)}, {v(vQ+3)}')
        A(f'v_add_f32 {v(vQ)}, {v(vQ)}, {v(vQ+2)}')
        A(f'v_add_f32 {v(vQ+1)}, {v(vQ+1)}, {v(vQ+3)}')
        A(f'v_cvt_pk_bf16_f32 {v(vTp)}, {v(vQ)}, {v(vQ+1)}')
        A(f'v_cmp_u_f32 vcc, {v(vQ)}, {v(vQ+1)}')
        stamp(1)
        A(f'v_permlane32_swap_b32 {v(vK)}, {v(vK+2)}')
        A(f'v_permlane32_swap_b32 {v(vK+1)}, {v(vK+3)}')
        A(f'v_add_f32 {v(vK)}, {v(vK)}, {v(vK+2)}')
        A(f'v_add_f32 {v(vK+1)}, {v(vK+1)}, {v(vK+3)}')
        A(f'v_cvt_pk_bf16_f32 {v(vTp+1)}, {v(vK)}, {v(vK+1)}')
        A(f'ds_write2_b32 {v(vTW)}, {v(vTp)}, {v(vTp+1)} offset0:0 offset1:4')

        A(f's_cbranch_vccnz {P}_retry' if not solo else 's_nop 0')
        A.label(P + '_mem_ok')

        def smv(t):
            A(sm(vV, 2, t))
        for t in range(4):
            smv(t)
        A(f's_cmp_eq_u32 {s(sWave)}, 3')
        A('s_waitcnt lgkmcnt(0)')
        A('s_barrier')
        stamp(9)
        A(f'ds_read_b32 {v(t4)}, {v(vL4)} offset:{LDS_MISC}')
        A(f's_cbranch_scc1 {P}_soft')
        for u in range(2):
            for hf in range(2):
                A(f'ds_read_b64_tr_b16 {v(vTr+4*u+2*hf,2)}, {v(vTR)} offset:{1024*u + 512*hf}')
        for t in range(4, 8):
            smv(t)
        A(f's_cmp_eq_u32 {s(sWave)}, 0')
        A('s_waitcnt lgkmcnt(0)')
        stamp('tr')
        A(f's_cbranch_scc1 {P}_sc0')
        A(f'v_mfma_f32_16x16x32_bf16 {v(vQ,4)}, {v(vKX,4)}, {v(vTr,4)}, 0')
        A(f'v_mfma_f32_16x16x32_bf16 {v(vQ,4)}, {v(vKX+4,4)}, {v(vTr+4,4)}, {v(vQ,4)}')
        A.label(P + '_sc1')
        A(f'v_cmp_eq_u32 vcc, {s(sRt)}, {v(t4)}')
        for i in range(4):
            A(f'v_mov_b32 {v(vK+i)}, 0')
        A(f's_cbranch_vccnz {P}_redo')
        A(f'buffer_store_dwordx4 {v(vQ,4)}, {v(vSst)}, {s(sWS,4)}, {s(sS)} offen {st_intra}')
        stamp(2)
        smv(8); smv(9)

        def vtail():
            for x in extra[2:]:
                A(x)
            for i in range(4):
                A(f'v_mov_b32 {v(vQ+i)}, 0')
            A(f'v_permlane32_swap_b32 {v(vV)}, {v(vV+2)}')
            A(f'v_permlane32_swap_b32 {v(vV+1)}, {v(vV+3)}')
            A(f'v_add_f32 {v(vV)}, {v(vV)}, {v(vV+2)}')
            A(f'v_add_f32 {v(vV+1)}, {v(vV+1)}, {v(vV+3)}')
            A(f'v_cvt_pk_bf16_f32 {v(vVp)}, {v(vV)}, {v(vV+1)}')
            A(f'buffer_store_dword {v(vVp)}, {v(vVMst)}, {s(sWS,4)}, {s(sVM)} offen {st_intra}')
            stamp(11)
            A(f's_mov_b32 {s(sCnt)}, 0')
            next_src()
            for i in range(4):
                A(f'v_mov_b32 {v(vV+i)}, 0')
            for i in range(8):
                A(f'v_mov_b32 {v(vD+i)}, 0')
            A(f's_cmp_eq_u32 {s(sStep)}, 63')
            A('s_cbranch_scc1 L_ch_last')

        def ldV():
            for c in range(3):
                A(f'buffer_load_dword {v(vVm+2*c)}, {v(vVMld)}, {s(sWS,4)}, {s(sVM)} offen offset:{256*c} sc1')
        vtail()
        A('.pad')
        delay(dV)
        A.label(P + '_pollV')
        ldV()
        A('s_waitcnt vmcnt(0)')
        A.label(P + '_chkV')
        A(f'v_max3_u32 {v(t3)}, {v(vVm)}, {v(vVm+2)}, {v(vVm+4)}')
        A(f'v_cmp_eq_u32 vcc, -1, {v(t3)}')
        A(f's_cbranch_vccnz {P}_againV' if not solo else 's_nop 0')
        A('s_waitcnt lgkmcnt(0)')
        stamp('Svm')
        A('s_barrier')
        stamp('Sbar')
        A(f'ds_read_b128 {v(vPx,4)}, {v(vLA)} offset:{LDS_S}')
        A(f'ds_read_b32 {v(vPm)}, {v(vL4)} offset:{LDS_S + 1024}')
        A('.pad ' + DUM)
        fill(fP)
        A('s_waitcnt lgkmcnt(1)')
        stamp('P')
        for u in range(3):
            A(f'v_mfma_f32_16x16x32_bf16 {v(vO+4*u,4)}, {v(vVX+4*u,4)}, {v(vPx,4)}, 0')
        A('s_waitcnt lgkmcnt(0)')
        A.label(P + '_pvm')
        vLs = vAf + 28
        for u in range(3):
            A(f'v_mfma_f32_16x16x32_bf16 {v(vO+4*u,4)}, {v(vVm+2*u,4)}, {v(vPm,4)}, {v(vO+4*u,4)}')
        stamp(4)
        for u in range(3):
            A(f'v_cvt_pk_bf16_f32 {v(vO+4*u)}, {v(vO+4*u)}, {v(vO+4*u+1)}')
            A(f'v_cvt_pk_bf16_f32 {v(vO+4*u+1)}, {v(vO+4*u+2)}, {v(vO+4*u+3)}')
            A(f'ds_write_b64 {v(vOW)}, {v(vO+4*u,2)} offset:{256*u}')
        stamp('Ow')
        A(f'v_mfma_f32_16x16x32_bf16 {v(vLs,4)}, {v(vPx,4)}, {v(vE,4)}, 0')
        A(f'v_mfma_f32_16x16x32_bf16 {v(vLs,4)}, {v(vPm,4)}, {v(vE,4)}, {v(vLs,4)}')
        slow = kv_dma_list()
        if pub:
            slow.append([f'buffer_store_dword {v(vVp)}, {v(vVMst)}, {s(sWS,4)}, {s(sVMo)} offen sc1',
                         f's_add_u32 {s(sVMo)}, {s(sVMo)}, {32 * 12 * 256}'])
        for _ in range(n1):
            for x in slow.pop(0):
                A(x)
        A('s_waitcnt lgkmcnt(0)')
        A('s_barrier')
        stamp(10)
        for t in range(3):
            A(f'ds_read_b128 {v(vOf+4*t,4)}, {v(vOR)} offset:{512*t}')

        for _ in range(min(n2, len(slow))):
            for x in slow.pop(0):
                A(x)

        def smo(u, t):
            A(f'v_smfmac_f32_16x16x64_bf16 {v(vD+4*u,4)}, {v(vOf+4*t,4)}, {woreg(u,t)}, {v(vIdx)}')
        for t in range(6):
            A(f's_waitcnt lgkmcnt({min(2, 5 - t)})')
            stamp('o%d' % t)
            smo(0, t)
            if t < 3:
                A(f'ds_read_b128 {v(vOf+4*(t+3),4)}, {v(vOR)} offset:{512*(t+3)}')
            elif slow:
                for x in slow.pop(0):
                    A(x)
        assert not slow
        fin = [f'v_rcp_f32 {v(vLs+r)}, {v(vLs+r)}' for r in range(4)]
        for t in range(6):
            smo(1, t)
            if fin:
                A(fin.pop(0))
        stamp('oend')
        for p_ in range(2):
            for r in range(4):
                A(f'v_mul_f32 {v(vD+4*p_+r)}, {v(vD+4*p_+r)}, {v(vLs+r)}')
            A(f'v_cvt_pk_bf16_f32 {v(vO+2*p_)}, {v(vD+4*p_)}, {v(vD+4*p_+1)}')
            A(f'v_cvt_pk_bf16_f32 {v(vO+2*p_+1)}, {v(vD+4*p_+2)}, {v(vD+4*p_+3)}')
        A(f'v_permlane16_swap_b32 {v(vO)}, {v(vO+2)}')
        A(f'v_permlane16_swap_b32 {v(vO+1)}, {v(vO+3)}')
        A(f'buffer_store_dwordx4 {v(vO,4)}, {v(vCst)}, {s(sWS,4)}, {s(sC)} offen sc1')
        A('.pad')
        stamp(5)
        kv_adv()
        delay(56)
        A(f's_cmp_ge_u32 {s(sWave)}, 2')
        A(f's_cbranch_scc1 {P}_reduce')
        A(f's_cmp_eq_u32 {s(sWave)}, 0')
        A(f's_cbranch_scc0 {P}_hk1')
        A(f'buffer_store_dwordx4 {v(vOnes,4)}, {v(vSpo)}, {s(sWS,4)}, {s(sSp)} offen {st_intra}')
        A('s_mov_b64 exec, 0xffff')
        A(f'buffer_store_dwordx4 {v(vOnes,4)}, {v(vSpo)}, {s(sWS,4)}, {s(sSp)} offen offset:1024 {st_intra}')
        A('s_mov_b64 exec, 1')
        A(f'v_mov_b32 {v(t0)}, {s(sStep)}')
        A(f'buffer_store_dword {v(t0)}, {v(vL4)}, {s(sWS,4)}, {s(sFlCh)} offen sc1')
        A('s_mov_b64 exec, -1')
        A(f's_add_u32 {s(sT1)}, {s(sStep)}, 3')
        A(f's_min_u32 {s(sT1)}, {s(sT1)}, 64')
        kv_wait(P + '_kvw', s(sT1))
        A(f's_branch {P}_hk')
        A.label(P + '_hk1')
        k_pub()
        A(f's_add_u32 {s(sT0)}, {s(sVMp)}, {s(sVMc)}')
        A(f'buffer_store_dwordx4 {v(vOnes,4)}, {v(vMpo)}, {s(sWS,4)}, {s(sMp)} offen {st_intra}')
        A(f'buffer_store_dwordx4 {v(vOnes,4)}, {v(vLA)}, {s(sWS,4)}, {s(sT0)} offen {st_intra}')
        A.label(P + '_hk')
        tldump()
        A(f's_add_u32 {s(sStep)}, {s(sStep)}, 1')
        slots()
        A(f's_mov_b32 {s(sCnt)}, 0')
        sleep(dM)

        def ldM():
            A(f's_mov_b32 m0, {s(sL5)}')
            A(f's_add_u32 {s(sT0)}, {s(sL5)}, 4096')
            for i in range(4):
                A(f'buffer_load_dwordx4 {v(vLA)}, {s(sWS,4)}, {s(sMa)} offen offset:{1024*i} sc1 lds')
            A(f's_mov_b32 m0, {s(sT0)}')
            A('s_nop 0')
            A(f'buffer_load_dwordx4 {v(vLA)}, {s(sWS,4)}, {s(sMb)} offen sc1 lds')
        A.label(P + '_gather')
        ldM()
        stamp('Missued')
        delay(gap)
        A.label(P + '_pollM')
        ldM()
        A('s_waitcnt vmcnt(5)')
        stamp('Mvm')
        A(f'ds_read_b128 {v(vP,4)}, {v(vCan)}')
        A(f'ds_read_b128 {v(vP+4,4)}, {v(vCan)} offset:64')
        A('s_waitcnt lgkmcnt(0)')
        for x in maxchain(range(vP, vP + 8), t0, t1):
            A(x)
        A(f's_cbranch_vccz {P}_b1' if not solo else f's_branch {P}_b1')
        timeout(P + '_pollM', 0)
        A.label(P + '_retry')
        for x in maxchain(range(vAf, vAf + 40), t0, t1):
            A(x)
        A(f's_cbranch_vccz {P}_mem_ok')
        A(f'v_mov_b32 {v(t0)}, {s(sRt)}')
        A(f'ds_write_b32 {v(vL4)}, {v(t0)} offset:{LDS_MISC}')
        A(f's_branch {P}_mem_ok')
        A.label(P + '_redo')
        for i in range(12):
            A(f'v_mov_b32 {v(vQ+i)}, 0')
        A('s_waitcnt vmcnt(0) lgkmcnt(0)')
        if cnt:
            A(f's_add_u32 {s(sAcc+3)}, {s(sAcc+3)}, 1')
        A(f's_add_u32 {s(sRt)}, {s(sRt)}, 1')
        A(f's_cmp_ge_u32 {s(sRt)}, 0x20000')
        A(f's_cbranch_scc1 {fail}')
        A(f's_mov_b32 {s(sCnt)}, 0')
        A(f's_cmp_ge_u32 {s(sWave)}, 2')
        A(f's_cbranch_scc1 {P}_b1')
        A(f's_branch {P}_gather')
        A.label(P + '_againV')
        timeout(P + '_pollV')
        A.label(P + '_soft')
        A('.pad ' + DUM)
        for t in range(4, 10):
            smv(t)
        A('s_waitcnt lgkmcnt(0)')
        A(f'v_cmp_eq_u32 vcc, {s(sRt)}, {v(t4)}')
        for i in range(4):
            A(f'v_mov_b32 {v(vK+i)}, 0')
        A(f's_cbranch_vccnz {P}_redo')
        vtail()
        delay(dS)
        sset = [[vAf, vAf + 4, vAf + 8, vAf + 12], [vP, vP + 4, vP + 8, vP + 12]]

        def ldS(k_):
            for c in range(3):
                A(f'buffer_load_dwordx4 {v(sset[k_][c],4)}, {v(vLA)}, {s(sWS,4)}, {s(sSg)} offen offset:{1280*c} sc1')
            for c in range(3):
                A(f'buffer_load_dword {v(sset[k_][3]+c)}, {v(vL4)}, {s(sWS,4)}, {s(sSg)} offen offset:{1280*c+1024} sc1')
        ldS(0)
        stamp('Sissued')
        fill(gapS // 4)
        A.label(P + '_pollS')
        vY = vAf + 32; vYT = vAf + 36
        for k_ in range(2):
            ldS(k_ ^ 1)
            A('s_waitcnt vmcnt(6)')
            X = sset[k_]
            for i in range(4):
                A(f'v_add_f32 {v(vY+i)}, {v(X[0]+i)}, {v(X[1]+i)}')
            A(f'v_add_f32 {v(vYT)}, {v(X[3])}, {v(X[3]+1)}')
            for i in range(4):
                A(f'v_add_f32 {v(vY+i)}, {v(vY+i)}, {v(X[2]+i)}')
            A(f'v_add_f32 {v(vYT)}, {v(vYT)}, {v(X[3]+2)}')
            A(f'v_max3_f32 {v(t0)}, {v(vY)}, {v(vY+1)}, {v(vYT)}')
            A(f'v_max3_f32 {v(t0)}, {v(t0)}, {v(vY+2)}, {v(vY+3)}')
            A(f'v_add_f32 {v(t2)}, {v(vY)}, {v(vY+1)}')
            A(f'v_add_f32 {v(t3)}, {v(vY+2)}, {v(vY+3)}')
            A(f'v_max_f32_dpp {v(t0)}, {v(t0)}, {v(t0)} row_ror:8 row_mask:0xf bank_mask:0xf')
            A(f'v_add_f32 {v(t2)}, {v(t2)}, {v(vYT)}')
            A(f'v_cmp_u_f32 vcc, {v(t2)}, {v(t3)}')
            A(f'v_mov_b32 {v(t1)}, {v(t0)}')
            A(f's_cbranch_vccz {P}_haveS' if not solo else f's_branch {P}_haveS')
            for x in maxchain(range(X[0], X[0] + 15), t2, t3):
                A(x)
            A(f's_cbranch_vccz {P}_haveS')
            if cnt:
                A(f's_add_u32 {s(sAcc+1)}, {s(sAcc+1)}, 1')
        timeout(P + '_pollS')
        A.label(P + '_haveS')
        stamp('Slds')

        def ldV1(c):
            A(f'buffer_load_dword {v(vVm+2*c)}, {v(vVMld)}, {s(sWS,4)}, {s(sVM)} offen offset:{256*c} sc1')
        ldV1(0)
        A(f'v_permlane16_swap_b32 {v(t0)}, {v(t1)}')
        A(f'v_max_f32 {v(t0)}, {v(t0)}, {v(t1)}')
        A(f'v_mov_b32 {v(t1)}, {v(t0)}')
        ldV1(1); ldV1(2)
        A(f'v_permlane32_swap_b32 {v(t0)}, {v(t1)}')
        A(f'v_max_f32 {v(t0)}, {v(t0)}, {v(t1)}')
        stamp(3)
        A(f'v_mul_f32 {v(t0)}, {s(sScale)}, {v(t0)}')
        for r in range(5):
            A(f'v_fma_f32 {v(vY+r)}, {v(vY+r)}, {s(sScale)}, -{v(t0)}')
        for r in range(5):
            A(f'v_exp_f32 {v(vY+r)}, {v(vY+r)}')
        A(f'v_cvt_pk_bf16_f32 {v(vPx)}, {v(vY)}, {v(vY+1)}')
        A(f'v_cvt_pk_bf16_f32 {v(vPx+1)}, {v(vY+2)}, {v(vY+3)}')
        A(f'v_mov_b32_dpp {v(t2)}, {v(vYT)} row_ror:8 row_mask:0xf bank_mask:0xf')
        A(f'v_mov_b32_dpp {v(vPx+2)}, {v(vPx)} row_ror:8 row_mask:0xf bank_mask:0xf')
        A(f'v_mov_b32_dpp {v(vPx+3)}, {v(vPx+1)} row_ror:8 row_mask:0xf bank_mask:0xf')
        A(f'v_cvt_pk_bf16_f32 {v(vPm)}, {v(vYT)}, {v(t2)}')
        A(f'ds_write_b128 {v(vLA)}, {v(vPx,4)} offset:{LDS_S}')
        A(f'ds_write_b32 {v(vL4)}, {v(vPm)} offset:{LDS_S + 1024}')
        A('s_waitcnt lgkmcnt(0)')
        stamp('Svm')
        A('s_barrier')
        A('s_waitcnt vmcnt(3)')
        for u in range(3):
            A(f'v_mfma_f32_16x16x32_bf16 {v(vO+4*u,4)}, {v(vVX+4*u,4)}, {v(vPx,4)}, 0')
        A.label(P + '_chkV3')
        A('s_waitcnt vmcnt(0)')
        A(f'v_max3_u32 {v(t3)}, {v(vVm)}, {v(vVm+2)}, {v(vVm+4)}')
        A(f'v_cmp_eq_u32 vcc, -1, {v(t3)}')
        A(f's_cbranch_vccz {P}_pvm' if not solo else f's_branch {P}_pvm')
        ldV()
        timeout(P + '_chkV3')
        A('.pad')
        A.label(P + '_sc0')
        A(f'v_mfma_f32_16x16x32_bf16 {v(vQ,4)}, {v(vTr,4)}, {v(vTr,4)}, 0')
        A(f'v_mfma_f32_16x16x32_bf16 {v(vQ,4)}, {v(vTr+4,4)}, {v(vTr+4,4)}, {v(vQ,4)}')
        A(f's_branch {P}_sc1')
        A.label(P + '_againC')
        for x in maxchain(range(vR, vR + 32), t0, t1):
            A(x)
        A(f's_cbranch_vccz {P}_have_c')
        timeout(P + '_pollC', 2)
        A.label(P + '_reduce')
        A(f's_cmp_ge_u32 {s(sRank)}, 20')
        A(f's_cbranch_scc1 {P}_nored')
        sleep(dC)
        A(f's_mov_b32 {s(sCnt)}, 0')
        A.label(P + '_pollC')
        for u in range(8):
            A(f'buffer_load_dwordx4 {v(vR+4*u,4)}, {v(vCld if u < 4 else vCld2)}, {s(sWS,4)}, {s(sC)} offen offset:{1024*(u&3)} sc1')
        for u in range(8):
            A(f's_waitcnt vmcnt({7-u})')
            A(f'v_mfma_f32_16x16x32_bf16 {v(vTr,4)}, {v(vR+4*u,4)}, {v(vSel+4*(u>>2),4)}, {v(vTr,4) if u else 0}')
        stamp('Cvm')
        A(f'v_permlane32_swap_b32 {v(vTr)}, {v(vTr+2)}')
        A(f'v_permlane32_swap_b32 {v(vTr+1)}, {v(vTr+3)}')
        A(f'v_add_f32 {v(vTr)}, {v(vTr)}, {v(vTr+2)}')
        A(f'v_add_f32 {v(vTr+1)}, {v(vTr+1)}, {v(vTr+3)}')
        A(f'v_cmp_u_f32 vcc, {v(vTr)}, {v(vTr+1)}')
        A(f'v_cvt_pk_bf16_f32 {v(t2)}, {v(vTr)}, {v(vTr+1)}')
        A(f's_cbranch_vccnz {P}_againC' if not solo else 's_nop 0')
        A.label(P + '_have_c')
        stamp(6)
        A(f'buffer_store_dword {v(t2)}, {v(vMst)}, {s(sWS,4)}, {s(sMn)} offen {st_intra}')
        if log:
            A(f'buffer_store_dword {v(t2)}, {v(vMst)}, {s(sWS,4)}, {s(sLog)} offen')
            A(f's_add_u32 {s(sLog)}, {s(sLog)}, 10240')
        stamp(7)
        A.label(P + '_nored')
        if True:
            A(f's_cmp_lt_u32 {s(sRank)}, 20')
            A(f's_cbranch_scc1 {P}_nw')
            A('s_waitcnt vmcnt(0)')
            A.label(P + '_nw')
        tldump()
        A(f's_add_u32 {s(sStep)}, {s(sStep)}, 1')
        slots()
        A(f's_branch {P}_b1')


    steps('F', '')
    if both:
        steps('S', 'sc1')
    A('.pad')
    A.label('L_ch_last')
    A(f'buffer_store_dword {v(vVp)}, {v(vVMst)}, {s(sWS,4)}, {s(sVMo)} offen sc1')
    A(f's_cmp_lg_u32 {s(sWave)}, 1')
    A('s_cbranch_scc1 L_ch_l1')
    k_pub()
    A.label('L_ch_l1')
    A('s_waitcnt vmcnt(0) lgkmcnt(0)')
    A('s_barrier')
    A(f's_cmp_lg_u32 {s(sWave)}, 0')
    A('s_cbranch_scc1 L_ch_l2')
    A('s_mov_b64 exec, 1')
    A(f'v_mov_b32 {v(t0)}, 64')
    A(f'buffer_store_dword {v(t0)}, {v(vL4)}, {s(sWS,4)}, {s(sFlCh)} offen sc1')
    A('s_mov_b64 exec, -1')
    A.label('L_ch_l2')
    if tl or cyc or cnt:
        A(f's_memrealtime {s(sTm,2)}')
        A('s_waitcnt lgkmcnt(0)')
        A(f's_sub_u32 {s(sT0)}, {s(sTm)}, {s(sTm2)}')
        A(f's_lshl_b32 {s(sT1)}, {s(e.sRole)}, 2')
        A(f's_add_u32 {s(sT1)}, {s(sT1)}, {s(sWave)}')
        A(f's_lshl_b32 {s(sT1)}, {s(sT1)}, 7')
        A(f's_add_u32 {s(sT1)}, {s(sT1)}, {TRACE_OFF}')
        A(f'v_mov_b32 {v(t1)}, 0')
        for i in range(12 if cyc else 0):
            A(f'v_mov_b32 {v(t0)}, {s(sTr+2*i)}')
            A(f'buffer_store_dword {v(t0)}, {v(t1)}, {s(sWS,4)}, {s(sT1)} offen offset:{4*i}')
        for i, r in enumerate((sAcc, sAcc + 1, sAcc + 2, sAcc + 3, sT0, sTm2, sTm)):
            A(f'v_mov_b32 {v(t0)}, {s(r)}')
            A(f'buffer_store_dword {v(t0)}, {v(t1)}, {s(sWS,4)}, {s(sT1)} offen offset:{48+4*i}')
    A('s_waitcnt vmcnt(0)')
    A(f's_branch {done}')
```

```python
from common import *


def gen_kv(A, e, isV, fail='L_fail', done='L_exit', fill=True, prof=False, nodma=False, nomid=False):
    pfx = 'L_v' if isV else 'L_k'
    SA = Alloc(e.sFree, 100)
    sW = SA(4, 4); sX = SA(4, 4); sP = SA(4, 4)
    sH = SA(); sSeg = SA(); sSrc = SA(); sDst = [SA(), SA()]; sOut = SA(); sC = SA(); sFl = SA()
    sT = [SA(), SA(), SA()]
    VA = Alloc(1, 256)
    vSrc = VA(10); vRd = VA(4); vLA = VA(); vFill = [VA(), VA(), VA()]; vOnes = VA(4); vZ = VA()
    vt = VA(8); vt = list(range(vt, vt + 8))
    vXf = VA(4 * 6)
    vAcc = VA(24)
    vPk = VA(12)

    def wreg(tl, t, hf):
        return a((tl * 20 + t) * 4 + 2 * hf, 2)

    def wfrag(tl, t):
        return a((tl * 20 + t) * 4, 4)
    A(f's_and_b32 {s(sH)}, {s(e.sRole)}, 31')
    A(f's_load_dwordx2 {s(sP,2)}, s[0:1], {32 if isV else 24}')
    A(f's_load_dwordx2 {s(sP+2,2)}, s[0:1], 0')
    A('s_waitcnt lgkmcnt(0)')
    srd(A, sW, sP, 7864320)
    srd(A, sX, sP + 2, 2621440)
    stage_w192(A, e, sW, sH, sT, vt, wreg, pfx)
    x_consts(A, e, vSrc, vRd, vt[0], vt[1], sT[0])
    A(f's_mul_i32 {s(sSrc)}, {s(e.sWave)}, 10240')
    A(f's_mov_b32 {s(sDst[0])}, {s(sSrc)}')
    A(f's_add_u32 {s(sDst[1])}, {s(sSrc)}, 40960')
    for g_ in x_dma(vSrc, sX, sSrc, sDst[0]):
        for x in g_:
            A(x)
    A(f's_add_u32 {s(sSrc)}, {s(sSrc)}, 40960')
    A(f'v_and_b32 {v(vLA)}, 63, v0')
    A(f'v_lshlrev_b32 {v(vLA)}, 4, {v(vLA)}')
    A(f's_mul_i32 {s(sOut)}, {s(sH)}, {SEG_H}')
    A(f's_mul_i32 {s(sT[0])}, {s(e.sWave)}, 3072')
    A(f's_add_u32 {s(sOut)}, {s(sOut)}, {s(sT[0])}')
    A(f's_add_u32 {s(sOut)}, {s(sOut)}, {VX_OFF if isV else KX_OFF}')
    A(f's_lshl_b32 {s(sFl)}, {s(sH)}, 7')
    A(f's_add_u32 {s(sFl)}, {s(sFl)}, {FL_KV + (4 if isV else 0)}')
    A(f'v_mov_b32 {v(vZ)}, 0')
    dofill = fill and not isV
    nfill = 3 if dofill else 0
    if dofill:
        for k in range(3):
            A(f's_add_u32 {s(sT[0])}, {s(e.sWave)}, {4*k}')
            A(f's_lshl_b32 {s(sT[0])}, {s(sT[0])}, 3')
            A(f'v_bfe_u32 {v(vt[0])}, v0, 3, 3')
            A(f'v_add_u32 {v(vt[0])}, {s(sT[0])}, {v(vt[0])}')
            A(f'v_cmp_gt_u32 vcc, 80, {v(vt[0])}')
            A(f'v_lshrrev_b32 {v(vt[1])}, 1, {v(vt[0])}')
            A(f'v_lshlrev_b32 {v(vt[1])}, 14, {v(vt[1])}')
            A(f'v_and_b32 {v(vt[0])}, 1, {v(vt[0])}')
            A(f'v_lshl_add_u32 {v(vt[1])}, {v(vt[0])}, 12, {v(vt[1])}')
            A(f'v_and_b32 {v(vt[0])}, 7, v0')
            A(f'v_lshl_add_u32 {v(vt[1])}, {v(vt[0])}, 4, {v(vt[1])}')
            A(f's_lshl_b32 {s(sT[0])}, {s(sH)}, 7')
            A(f'v_add_u32 {v(vt[1])}, {s(sT[0])}, {v(vt[1])}')
            A(f'v_mov_b32 {v(vt[0])}, {OOB}')
            A(f'v_cndmask_b32 {v(vFill[k])}, {v(vt[0])}, {v(vt[1])}, vcc')
        for i in range(4):
            A(f'v_mov_b32 {v(vOnes+i)}, -1')
    wait_go(A, pfx + '_go', e, vt[0], vt[1], fail)
    A(f's_mov_b32 {s(sSeg)}, 0')
    if prof:
        A('s_memtime s[80:81]'); A('s_memrealtime s[82:83]')

    def publish():
        l = A.newlabel(pfx + '_p')
        A(f's_cmp_lg_u32 {s(e.sWave)}, 0')
        A(f's_cbranch_scc1 {l}')
        A(f'v_mov_b32 {v(vt[0])}, {s(sSeg)}')
        A('s_mov_b64 exec, 1')
        A(f'buffer_store_dword {v(vt[0])}, {v(vZ)}, {s(e.sWS,4)}, {s(sFl)} offen sc1')
        A('s_mov_b64 exec, -1')
        A.label(l)

    for b in range(2):
        A.label(f'{pfx}_seg{b}')
        A(f's_waitcnt vmcnt({3 + nfill})')
        A('s_barrier')
        buf = 40960 * b
        dma = x_dma(vSrc, sX, sSrc, sDst[b ^ 1])
        for t in range(2):
            for xt in range(2):
                A(x_read(vXf + 8 * t + 4 * xt, vRd, t, xt, buf))
        for t in range(20):
            k = t % 3
            if t == 10 and not nomid:
                A('s_waitcnt vmcnt(5)')
                A('s_barrier')
                publish()
            if t + 2 < 20:
                for xt in range(2):
                    A(x_read(vXf + 8 * ((t + 2) % 3) + 4 * xt, vRd, t + 2, xt, buf))
            A(f's_waitcnt lgkmcnt({min(4, 2 * (19 - t))})')
            for tl in range(3):
                for xt in range(2):
                    acc = v(vAcc + 8 * tl + 4 * xt, 4)
                    xf = v(vXf + 8 * k + 4 * xt, 4)
                    ops = (xf, wfrag(tl, t)) if isV else (wfrag(tl, t), xf)
                    A(f'v_mfma_f32_16x16x32_bf16 {acc}, {ops[0]}, {ops[1]}, {acc if t else 0}')
                if tl == 0 and t % 2 == 0 and not nodma:
                    for x in dma.pop(0):
                        A(x)
        A(f's_add_u32 {s(sSrc)}, {s(sSrc)}, 40960')
        if dofill:
            c_base(A, sC, sSeg, e.sPar, sT[0], sT[1])
            for k in range(3):
                A(f'buffer_store_dwordx4 {v(vOnes,4)}, {v(vFill[k])}, {s(e.sWS,4)}, {s(sC)} offen sc1')
        for tl in range(3):
            for q in range(4):
                A(f'v_cvt_pk_bf16_f32 {v(vPk+4*tl+q)}, {v(vAcc+8*tl+2*q)}, {v(vAcc+8*tl+2*q+1)}')
            A(f'buffer_store_dwordx4 {v(vPk+4*tl,4)}, {v(vLA)}, {s(e.sWS,4)}, {s(sOut)} offen offset:{1024*tl} sc1')
        A(f's_add_u32 {s(sOut)}, {s(sOut)}, {SEG_ALL}')
        A(f's_add_u32 {s(sSeg)}, {s(sSeg)}, 1')
        A(f's_cmp_lt_u32 {s(sSeg)}, 64')
        if b == 0:
            pass
        else:
            A(f's_cbranch_scc1 {pfx}_seg0')
    A('s_waitcnt vmcnt(0)')
    if prof:
        A('s_memtime s[84:85]'); A('s_memrealtime s[86:87]'); A('s_waitcnt lgkmcnt(0)')
        A('s_sub_u32 s84, s84, s80'); A('s_sub_u32 s86, s86, s82')
        A(f'v_mov_b32 {v(vt[0])}, s84'); A(f'v_mov_b32 {v(vt[1])}, s86'); A(f'v_mov_b32 {v(vt[2])}, {64 + (8 if isV else 0)}')
        A(f'buffer_store_dwordx2 {v(vt[0],2)}, {v(vt[2])}, {s(e.sDBG,4)}, 0 offen')
    A('s_barrier')
    publish()
    A('s_waitcnt vmcnt(0)')
    A(f's_branch {done}')
```

```python
from common import *
from role_qa import cached_wait

CP = 5152
LU = 32
KP = 4160
LKC = LU + 16 * CP


def gen_conv(A, e, sTask, fail):
    pfx = 'L_cv'
    SA = Alloc(e.sFree + 1, 102)
    sK = SA(4, 4); sV = SA(4, 4); sF = SA(4, 4); sP = SA(12, 4)
    sCh = SA(); sI = SA(); sD = SA(); sKc = SA(); sSrc = SA()
    sT = [SA(), SA(), SA()]
    VA = Alloc(1, 256)
    vLA = VA(); vB0 = VA(); vB4 = VA(); vBm = VA(); vW = VA(); vA = VA(); vBL = VA(); vBU = VA(); vZa = VA(); vE = VA()
    vt = VA(8); vt = list(range(vt, vt + 8))
    t0, t1, t2, t3 = vt[:4]
    A(f's_load_dwordx8 {s(sP,8)}, s[0:1], 64')
    A(f's_load_dwordx2 {s(sP+8,2)}, s[0:1], 96')
    A('s_waitcnt lgkmcnt(0)')
    srd(A, sK, sP, 2621440)
    srd(A, sV, sP + 2, 2621440)
    srd(A, sF, sP + 4, 5120)
    A(f'v_and_b32 {v(vLA)}, 63, v0')
    P1 = Alloc(VA.p, 256)
    vWt = P1(32); vKr = P1(44); vVr = P1(32); vk = P1(22); vv = P1(16); vo = P1(8)
    A(f'v_and_b32 {v(t0)}, 1, v0')
    A(f's_lshl_b32 {s(sT[0])}, {s(sTask)}, 7')
    A(f'v_lshlrev_b32 {v(t1)}, 6, {v(t0)}')
    for i in range(4):
        A(f'buffer_load_dwordx4 {v(vKr+4*i,4)}, {v(t1)}, {s(sF,4)}, {s(sT[0])} offen offset:{16*i}')
    A(f'v_mov_b32 {v(vo)}, 0')
    for i in range(1, 4):
        A(f'v_mov_b32 {v(vo+i)}, 0')
    A(f'v_and_b32 {v(t2)}, 15, v0')
    A(f'v_mul_u32_u24 {v(t3)}, {CP}, {v(t2)}')
    A(f'ds_write_b128 {v(t3)}, {v(vo,4)} offset:{LU - 16}')
    A(f'v_mul_u32_u24 {v(t3)}, {KP}, {v(t2)}')
    A(f'v_bfe_u32 {v(t2)}, v0, 4, 2')
    A(f'v_lshl_add_u32 {v(t3)}, {v(t2)}, 4, {v(t3)}')
    A(f'v_add_u32 {v(t3)}, {LKC}, {v(t3)}')
    A(f'ds_write_b128 {v(t3)}, {v(vo,4)}')
    A('s_waitcnt vmcnt(0)')
    for c in range(8):
        for j in range(2):
            A(f'v_lshlrev_b32 {v(vWt+4*c+2*j)}, 16, {v(vKr+2*c+j)}')
            A(f'v_and_b32 {v(vWt+4*c+2*j+1)}, 0xffff0000, {v(vKr+2*c+j)}')
    A(f's_mov_b32 {s(sI)}, 0')
    A.label(pfx + '_p1')
    A(f's_lshl_b32 {s(sT[0])}, {s(sI)}, 2')
    A(f's_add_u32 {s(sT[0])}, {s(sT[0])}, {s(e.sWave)}')
    A(f's_lshl_b32 {s(sT[0])}, {s(sT[0])}, 5')
    A(f'v_lshrrev_b32 {v(t1)}, 1, {v(vLA)}')
    A(f'v_add_u32 {v(t1)}, {s(sT[0])}, {v(t1)}')
    A(f's_lshl_b32 {s(sT[1])}, {s(sTask)}, 5')
    A(f'v_mul_u32_u24 {v(vB0)}, 10240, {v(t1)}')
    A(f'v_lshl_add_u32 {v(vB0)}, {v(t0)}, 4, {v(vB0)}')
    A(f'v_add_u32 {v(vB0)}, {s(sT[1])}, {v(vB0)}')
    A(f'v_add_u32 {v(vB4)}, 5120, {v(vB0)}')
    A(f'v_subrev_u32 {v(vBm)}, 3840, {v(vB0)}')
    A(f'v_cmp_eq_u32 vcc, 0, {v(t1)}')
    A(f'v_mov_b32 {v(t2)}, {OOB}')
    A(f'v_cndmask_b32 {v(vBm)}, {v(vBm)}, {v(t2)}, vcc')
    for j in range(11):
        base, off = (vBm, j) if j < 3 else (vB0, j - 3) if j < 7 else (vB4, j - 7)
        A(f'buffer_load_dwordx4 {v(vKr+4*j,4)}, {v(base)}, {s(sK,4)}, 0 offen offset:{1280*off}')
    for j in range(8):
        A(f'buffer_load_dwordx4 {v(vVr+4*j,4)}, {v(vB0 if j < 4 else vB4)}, {s(sV,4)}, 0 offen offset:{1280*(j&3)}')
    A(f'v_mul_u32_u24 {v(vW)}, {8*CP}, {v(t0)}')
    A(f'v_lshrrev_b32 {v(t2)}, 3, {v(t1)}')
    A(f'v_mul_u32_u24 {v(t2)}, 160, {v(t2)}')
    A(f'v_bfe_u32 {v(t3)}, {v(t1)}, 2, 1')
    A(f'v_lshl_add_u32 {v(t2)}, {v(t3)}, 6, {v(t2)}')
    A(f'v_and_b32 {v(t3)}, 3, {v(t1)}')
    A(f'v_xor_b32 {v(t3)}, 3, {v(t3)}')
    A(f'v_lshl_add_u32 {v(t2)}, {v(t3)}, 4, {v(t2)}')
    A(f'v_add3_u32 {v(vW)}, {v(vW)}, {v(t2)}, {LU}')
    A('s_waitcnt vmcnt(0)')
    for i in range(4):
        for hi in range(2):
            c = 2 * i + hi
            for j in range(11):
                A(f'v_lshlrev_b32 {v(vk+j)}, 16, {v(vKr+4*j+i)}' if hi == 0 else f'v_and_b32 {v(vk+j)}, 0xffff0000, {v(vKr+4*j+i)}')
            for j in range(8):
                A(f'v_lshlrev_b32 {v(vv+j)}, 16, {v(vVr+4*j+i)}' if hi == 0 else f'v_and_b32 {v(vv+j)}, 0xffff0000, {v(vVr+4*j+i)}')
            for j in range(8):
                A(f'v_mul_f32 {v(vv+8+j)}, {v(vk+j)}, {v(vWt+4*c+3)}')
            for d in (2, 1, 0):
                for j in range(8):
                    A(f'v_fmac_f32 {v(vv+8+j)}, {v(vk+j+3-d)}, {v(vWt+4*c+d)}')
            for j in range(8):
                A(f'v_mul_f32 {v(vv+j)}, {v(vv+j)}, {v(vv+8+j)}')
            o = vo + 4 * hi
            for q in range(4):
                A(f'v_cvt_pk_bf16_f32 {v(o+q)}, {v(vv+7-2*q)}, {v(vv+6-2*q)}')
            A(f'ds_write_b128 {v(vW)}, {v(o,4)} offset:{CP*c}')
    A(f's_add_u32 {s(sI)}, {s(sI)}, 1')
    A(f's_cmp_lt_u32 {s(sI)}, 2')
    A(f's_cbranch_scc1 {pfx}_p1')
    P2 = Alloc(VA.p, 256)
    vAcc = P2(32); vAf = P2(24); vBf = [P2(16), P2(16)]; vU = P2(16); vH = P2(2)
    srd(A, sK, sP + 6, 2621440)
    A(f's_mul_i32 {s(sKc)}, {s(e.sWave)}, {4*KP}')
    A(f's_add_u32 {s(sKc)}, {s(sKc)}, {LKC}')
    A(f'v_and_b32 {v(t0)}, 15, v0')
    A(f'v_bfe_u32 {v(t1)}, v0, 4, 2')
    A(f'v_add_u32 {v(t2)}, 1, {v(t0)}')
    A(f'v_and_b32 {v(t3)}, 3, {v(t2)}')
    A(f'v_sub_u32 {v(t2)}, {v(t2)}, {v(t3)}')
    A(f'v_lshl_add_u32 {v(t2)}, {v(t1)}, 3, {v(t2)}')
    A(f'v_lshlrev_b32 {v(t2)}, 1, {v(t2)}')
    A(f'v_mul_u32_u24 {v(t3)}, {KP}, {v(t3)}')
    A(f'v_add3_u32 {v(vA)}, {v(t2)}, {v(t3)}, {s(sKc)}')
    A(f'v_mul_u32_u24 {v(vE)}, 160, {v(t0)}')
    A(f'v_lshlrev_b32 {v(vLA)}, 4, {v(vLA)}')
    A(f's_mov_b32 {s(sI)}, 0')
    A('s_waitcnt lgkmcnt(0)')
    A('s_barrier')
    A.label(pfx + '_ch')
    A(f's_lshl_b32 {s(sCh)}, {s(e.sWave)}, 2')
    A(f's_add_u32 {s(sCh)}, {s(sCh)}, {s(sI)}')
    A(f's_lshl_b32 {s(sT[0])}, {s(sTask)}, 4')
    A(f's_add_u32 {s(sT[0])}, {s(sT[0])}, {s(sCh)}')
    A(f's_lshl_b32 {s(sSrc)}, {s(sT[0])}, 12')
    A(f's_and_b32 {s(sT[1])}, {s(sT[0])}, 0xfffe')
    A(f's_lshl_b32 {s(sT[1])}, {s(sT[1])}, 1')
    A(f's_load_dword {s(sD)}, {s(sP+8,2)}, {s(sT[1])}')
    A(f'v_mov_b32 {v(t2)}, 0')
    A(f'buffer_load_dwordx2 {v(vH,2)}, {v(t2)}, {s(sK,4)}, {s(sSrc)} offen')
    for sh in range(4):
        A(f's_add_u32 m0, {s(sKc)}, {sh*KP + 64}')
        A(f's_add_u32 {s(sT[1])}, {s(sSrc)}, {2*sh}')
        for i in range(4):
            A(f'buffer_load_dwordx4 {v(vLA)}, {s(sK,4)}, {s(sT[1])} offen offset:{1024*i} lds')
    A(f's_mul_i32 {s(sT[2])}, {s(sCh)}, {CP}')
    A(f's_add_u32 {s(sT[2])}, {s(sT[2])}, {LU}')
    A(f'v_lshl_add_u32 {v(vBL)}, {v(t1)}, 4, {v(vE)}')
    A(f'v_add_u32 {v(vBL)}, {s(sT[2])}, {v(vBL)}')
    A(f's_sub_u32 {s(sT[1])}, {s(sT[2])}, 16')
    A(f'v_mov_b32 {v(vZa)}, {s(sT[1])}')
    A('s_waitcnt lgkmcnt(0)')
    A(f's_and_b32 {s(sT[0])}, {s(sT[0])}, 1')
    A(f's_lshl_b32 {s(sT[0])}, {s(sT[0])}, 4')
    A(f's_lshr_b32 {s(sD)}, {s(sD)}, {s(sT[0])}')
    A(f's_lshl_b32 {s(sD)}, {s(sD)}, 16')
    A('s_waitcnt vmcnt(16)')
    A(f'v_and_b32 {v(t2)}, 3, v0')
    A(f'v_lshlrev_b32 {v(t3)}, 4, {v(t2)}')
    A(f'v_sub_u32 {v(t3)}, 48, {v(t3)}')
    A(f'v_lshlrev_b64 {v(vH,2)}, {v(t3)}, {v(vH,2)}')
    A(f'v_lshlrev_b64 {v(vH,2)}, 16, {v(vH,2)}')
    A(f'v_mul_u32_u24 {v(t2)}, {KP}, {v(t2)}')
    A(f'v_add_u32 {v(t2)}, {s(sKc)}, {v(t2)}')
    A(f'ds_write_b64 {v(t2)}, {v(vH,2)} offset:56')
    A('s_waitcnt vmcnt(0)')

    def rdB(win, wp):
        dst = v(vBf[win] + 4 * (wp % 4), 4)
        rel = (wp >> 1) * 160 + (wp & 1) * 64 + win * 16 * 160
        if rel >= 0:
            return [f'ds_read_b128 {dst}, {v(vBL)} offset:{rel}']
        tmp = vt[4 + win]
        return [f'v_subrev_u32 {v(tmp)}, {-rel}, {v(vBL)}', f'v_max_i32 {v(tmp)}, {v(tmp)}, {v(vZa)}',
                f'ds_read_b128 {dst}, {v(tmp)}']

    def rdA(d):
        return [f'ds_read_b64 {v(vAf + 8*(d % 3) + 4*mt + 2*h_, 2)}, {v(vA)} offset:{64*d + 32*mt + 8*h_}'
                for mt in range(2) for h_ in range(2)]

    def reads(d):
        out = rdA(d) + rdB(1, -d)
        if d < 32:
            out += rdB(0, -d)
        return out

    def nlds(d):
        return 0 if d > 63 else (6 if d < 32 else 5)
    for x in rdB(1, 1) + rdB(0, 1) + reads(0) + reads(1):
        A(x)
    for d in range(64):
        pend = reads(d + 2) if d + 2 < 64 else []
        A(f's_waitcnt lgkmcnt({nlds(d + 1)})')
        mf = []
        for win in ((1, 0) if d < 32 else (1,)):
            for b in range(2):
                for mt in range(2):
                    acc = v(vAcc + 16 * win + 8 * b + 4 * mt, 4)
                    mf.append(f'v_mfma_f32_16x16x32_bf16 {acc}, {v(vAf + 8*(d % 3) + 4*mt, 4)}, '
                              f'{v(vBf[win] + 4*((b - d) % 4), 4)}, {acc if d else 0}')
        per = -(-len(pend) // len(mf))
        for x in mf:
            A(x)
            for _ in range(per):
                if pend:
                    A(pend.pop(0))
    A(f'v_lshlrev_b32 {v(t2)}, 3, {v(t1)}')
    A(f'v_add3_u32 {v(t3)}, {v(vE)}, {v(t2)}, {s(sT[2])}')
    A(f'v_sub_u32 {v(t2)}, {v(vE)}, {v(t2)}')
    A(f'v_add_u32 {v(t2)}, {s(sT[2])}, {v(t2)}')
    tiles = [(win, b, mt) for win in range(2) for b in range(2) for mt in range(2)]
    for i, (win, b, mt) in enumerate(tiles):
        A(f'ds_read_b64 {v(vU+2*i,2)}, {v(t2)} offset:{win*2560 + b*64 + 56 - 32*mt}')
    A('s_waitcnt lgkmcnt(0)')
    for i, (win, b, mt) in enumerate(tiles):
        acc = vAcc + 16 * win + 8 * b + 4 * mt
        x0, x1 = vt[4], vt[5]
        for r in range(4):
            src = vU + 2 * i + (1 - (r >> 1))
            x = (x0, x1)[r & 1]
            A(f'v_and_b32 {v(x)}, 0xffff0000, {v(src)}' if r % 2 == 0 else f'v_lshlrev_b32 {v(x)}, 16, {v(src)}')
            A(f'v_fmac_f32 {v(acc+r)}, {s(sD)}, {v(x)}')
        A(f'v_cvt_pk_bf16_f32 {v(acc)}, {v(acc)}, {v(acc+1)}')
        A(f'v_cvt_pk_bf16_f32 {v(acc+1)}, {v(acc+2)}, {v(acc+3)}')
        A(f'ds_write_b64 {v(t3)}, {v(acc,2)} offset:{win*2560 + b*64 + 32*mt}')
    A(f's_add_u32 {s(sI)}, {s(sI)}, 1')
    A(f's_cmp_lt_u32 {s(sI)}, 4')
    A(f's_cbranch_scc1 {pfx}_ch')
    A(f'v_bfe_u32 {v(t2)}, v0, 2, 4')
    A(f'v_mul_u32_u24 {v(t2)}, {CP}, {v(t2)}')
    A(f'v_and_b32 {v(t3)}, 3, v0')
    A(f'v_lshl_add_u32 {v(t2)}, {v(t3)}, 3, {v(t2)}')
    A(f's_lshr_b32 {s(sT[0])}, {s(e.sWave)}, 1')
    A(f's_mul_i32 {s(sT[0])}, {s(sT[0])}, 160')
    A(f's_and_b32 {s(sT[1])}, {s(e.sWave)}, 1')
    A(f's_lshl_b32 {s(sT[1])}, {s(sT[1])}, 6')
    A(f's_add_u32 {s(sT[0])}, {s(sT[0])}, {s(sT[1])}')
    A(f's_add_u32 {s(sT[0])}, {s(sT[0])}, {LU}')
    A(f'v_add_u32 {v(t2)}, {s(sT[0])}, {v(t2)}')
    A(f's_lshl_b32 {s(sSrc)}, {s(sTask)}, 16')
    A(f's_lshl_b32 {s(sT[0])}, {s(e.sWave)}, 10')
    A(f's_add_u32 {s(sSrc)}, {s(sSrc)}, {s(sT[0])}')
    A(f's_add_u32 {s(sSrc)}, {s(sSrc)}, {Z_OFF}')
    A('s_waitcnt lgkmcnt(0)')
    A('s_barrier')
    for half in range(2):
        for i in range(8):
            for qt in range(2):
                A(f'ds_read_b64_tr_b16 {v(vAcc+4*i+2*qt,2)}, {v(t2)} offset:{320*(8*half+i) + 32*qt}')
            if i == 5:
                A('s_waitcnt lgkmcnt(8)')
        for i in range(8):
            A(f's_waitcnt lgkmcnt({min(14 - 2*i, 8)})')
            A(f'buffer_store_dwordx4 {v(vAcc+4*i,4)}, {v(vLA)}, {s(e.sWS,4)}, {s(sSrc)} offen sc1')
            A(f's_add_u32 {s(sSrc)}, {s(sSrc)}, 4096')
        A('s_waitcnt vmcnt(0)')
    A('s_barrier')
    A(f's_cmp_lg_u32 {s(e.sWave)}, 0')
    A(f's_cbranch_scc1 {pfx}_end')
    A(f's_lshl_b32 {s(sT[0])}, {s(sTask)}, 2')
    A(f's_add_u32 {s(sT[0])}, {s(sT[0])}, {FL_MISC + 256}')
    A(f'v_mov_b32 {v(t2)}, 1')
    A(f'v_mov_b32 {v(t3)}, 0')
    A('s_mov_b64 exec, 1')
    A(f'buffer_store_dword {v(t2)}, {v(t3)}, {s(e.sWS,4)}, {s(sT[0])} offen sc1')
    A('s_mov_b64 exec, -1')
    A.label(pfx + '_end')


def gen_gate(A, e, sTask, fail):
    pfx = 'L_g'
    SA = Alloc(e.sFree + 1, 102)
    sX = SA(4, 4); sW = SA(4, 4); sP = SA(4, 4); sG = SA(); sT = [SA(), SA()]
    VA = Alloc(1, 256)
    vA = VA(); vq = VA(); t0 = VA(); t1 = VA(); vGa = VA(); vAcc = VA(4)
    vW = VA(80); vX = VA(80)
    A(f's_load_dwordx2 {s(sP,2)}, s[0:1], 0')
    A(f's_load_dwordx2 {s(sP+2,2)}, s[0:1], 104')
    A('s_waitcnt lgkmcnt(0)')
    srd(A, sX, sP, 2621440)
    srd(A, sW, sP + 2, 1280)
    A(f'v_and_b32 {v(vq)}, 3, v0')
    A(f'v_lshlrev_b32 {v(vq)}, 4, {v(vq)}')
    for i in range(20):
        A(f'buffer_load_dwordx4 {v(vW+4*i,4)}, {v(vq)}, {s(sW,4)}, 0 offen offset:{64*i}')
    A(f'v_bfe_u32 {v(t0)}, v0, 2, 4')
    A(f'v_mul_u32_u24 {v(vA)}, 1280, {v(t0)}')
    A(f'v_add_u32 {v(vA)}, {v(vA)}, {v(vq)}')
    A(f'v_lshlrev_b32 {v(t0)}, 2, {v(t0)}')
    A(f'v_cmp_eq_u32 vcc, 0, {v(vq)}')
    A(f'v_mov_b32 {v(t1)}, {OOB}')
    A(f'v_cndmask_b32 {v(vGa)}, {v(t1)}, {v(t0)}, vcc')
    A(f's_sub_u32 {s(sG)}, {s(sTask)}, 40')
    A(f's_lshl_b32 {s(sG)}, {s(sG)}, 2')
    A(f's_add_u32 {s(sG)}, {s(sG)}, {s(e.sWave)}')
    A.label(pfx + '_l')
    A(f's_mul_i32 {s(sT[0])}, {s(sG)}, 20480')
    for i in range(20):
        A(f'buffer_load_dwordx4 {v(vX+4*i,4)}, {v(vA)}, {s(sX,4)}, {s(sT[0])} offen offset:{64*i}')
    for i in range(4):
        A(f'v_mov_b32 {v(vAcc+i)}, 0')
    A('s_waitcnt vmcnt(0)')
    for i in range(80):
        A(f'v_dot2_f32_bf16 {v(vAcc+i%4)}, {v(vX+i)}, {v(vW+i)}, {v(vAcc+i%4)}')
    A('s_nop 3')
    A(f'v_add_f32 {v(vAcc)}, {v(vAcc)}, {v(vAcc+1)}')
    A(f'v_add_f32 {v(vAcc+2)}, {v(vAcc+2)}, {v(vAcc+3)}')
    A(f'v_add_f32 {v(t0)}, {v(vAcc)}, {v(vAcc+2)}')
    A(f'v_add_f32_dpp {v(t0)}, {v(t0)}, {v(t0)} quad_perm:[1,0,3,2] row_mask:0xf bank_mask:0xf')
    A(f'v_add_f32_dpp {v(t0)}, {v(t0)}, {v(t0)} quad_perm:[2,3,0,1] row_mask:0xf bank_mask:0xf')
    A(f'v_mul_f32 {v(t0)}, {f32bits(-1.4426950408889634):#x}, {v(t0)}')
    A(f'v_exp_f32 {v(t0)}, {v(t0)}')
    A(f'v_add_f32 {v(t0)}, 1.0, {v(t0)}')
    A(f'v_rcp_f32 {v(t0)}, {v(t0)}')
    A(f's_lshl_b32 {s(sT[0])}, {s(sG)}, 6')
    A(f's_add_u32 {s(sT[0])}, {s(sT[0])}, {G_OFF}')
    A(f'buffer_store_dword {v(t0)}, {v(vGa)}, {s(e.sWS,4)}, {s(sT[0])} offen sc1')
    A(f'v_mov_b32 {v(t0)}, 1')
    A(f'v_mov_b32 {v(t1)}, {FL_MISC + 128}')
    A('s_waitcnt vmcnt(0)')
    A('s_mov_b64 exec, 1')
    A(f'buffer_atomic_add {v(t0)}, {v(t1)}, {s(e.sWS,4)}, 0 offen sc1')
    A('s_mov_b64 exec, -1')
    A(f's_add_u32 {s(sG)}, {s(sG)}, 96')
    A(f's_cmp_lt_u32 {s(sG)}, 128')
    A(f's_cbranch_scc1 {pfx}_l')


def gen_fin(A, e, sTask, fail, done):
    pfx = 'L_f'
    SA = Alloc(e.sFree + 1, 102)
    sX = SA(4, 4); sOut = SA(4, 4); sP = SA(4, 4)
    sTile = SA(); sSeg = SA(); sCs = SA(); sTau = SA(); sQt = SA(); sCol = SA(); sAP = SA(4); sZ = SA(); sRow = SA(); sGo = SA()
    sFl = SA(); sRdy = SA(); sNeed = SA(); sT = [SA(), SA()]
    VA = Alloc(1, 64)
    vLA = VA(); vL4 = VA(); vXa = VA(); vGa = VA(); t0 = VA(); t1 = VA(); vG = VA()
    vP = VA(16); vZ = VA(2); vX = VA(2); vB = VA(8)
    A(f's_load_dwordx2 {s(sP,2)}, s[0:1], 0')
    A(f's_load_dwordx2 {s(sP+2,2)}, s[0:1], 112')
    A(f's_lshl_b32 {s(sT[0])}, {s(sTask)}, 2')
    A(f's_add_u32 {s(sT[0])}, {s(sT[0])}, {s(e.sWave)}')
    A(f's_mul_i32 {s(sSeg)}, {s(sT[0])}, 820')
    A(f's_lshr_b32 {s(sSeg)}, {s(sSeg)}, 16')
    A(f's_mul_i32 {s(sT[1])}, {s(sSeg)}, 80')
    A(f's_sub_u32 {s(sTile)}, {s(sT[0])}, {s(sT[1])}')
    A('s_waitcnt vmcnt(0) lgkmcnt(0)')
    A(f's_cmp_ge_u32 {s(sSeg)}, 3')
    A(f's_cbranch_scc1 {done}')
    srd(A, sX, sP, 2621440)
    srd(A, sOut, sP + 2, 2621440)
    A(f's_mul_i32 {s(sCs)}, {s(sTile)}, 6554')
    A(f's_lshr_b32 {s(sCs)}, {s(sCs)}, 16')
    A(f's_mul_i32 {s(sT[0])}, {s(sCs)}, 10')
    A(f's_sub_u32 {s(sTau)}, {s(sTile)}, {s(sT[0])}')
    A(f's_cmp_ge_u32 {s(sTau)}, 5')
    A(f's_cselect_b32 {s(sQt)}, 1, 0')
    A(f's_mul_i32 {s(sT[0])}, {s(sQt)}, 5')
    A(f's_sub_u32 {s(sT[0])}, {s(sTau)}, {s(sT[0])}')
    A(f's_mul_i32 {s(sCol)}, {s(sCs)}, 5')
    A(f's_add_u32 {s(sCol)}, {s(sCol)}, {s(sT[0])}')
    A(f'v_and_b32 {v(vL4)}, 63, v0')
    A(f'v_lshlrev_b32 {v(vLA)}, 4, {v(vL4)}')
    A(f'v_lshlrev_b32 {v(vL4)}, 2, {v(vL4)}')
    A(f'v_and_b32 {v(t0)}, 15, v0')
    A(f'v_lshlrev_b32 {v(vGa)}, 2, {v(t0)}')
    A(f'v_mul_u32_u24 {v(vXa)}, 1280, {v(t0)}')
    A(f'v_bfe_u32 {v(t0)}, v0, 4, 2')
    A(f'v_lshl_add_u32 {v(vXa)}, {v(t0)}, 3, {v(vXa)}')
    A(f's_lshl_b32 {s(sFl)}, {s(sCs)}, 7')
    A(f's_and_b32 {s(sT[0])}, {s(sTau)}, 3')
    A(f's_lshl_b32 {s(sT[0])}, {s(sT[0])}, 4')
    A(f's_add_u32 {s(sFl)}, {s(sFl)}, {s(sT[0])}')
    A(f's_add_u32 {s(sFl)}, {s(sFl)}, {FL_WO}')
    A(f's_mul_i32 {s(sAP)}, {s(sSeg)}, {32 * 10240}')
    A(f's_mul_i32 {s(sT[0])}, {s(sCs)}, 40960')
    A(f's_add_u32 {s(sAP)}, {s(sAP)}, {s(sT[0])}')
    A(f's_lshl_b32 {s(sT[0])}, {s(sTau)}, 10')
    A(f's_add_u32 {s(sAP)}, {s(sAP)}, {s(sT[0])}')
    A(f's_add_u32 {s(sAP)}, {s(sAP)}, {AP_OFF}')
    A(f's_lshl_b32 {s(sZ)}, {s(sCol)}, 16')
    A(f's_lshl_b32 {s(sT[0])}, {s(sSeg)}, 10')
    A(f's_add_u32 {s(sZ)}, {s(sZ)}, {s(sT[0])}')
    A(f's_lshl_b32 {s(sT[0])}, {s(sQt)}, 3')
    A(f's_add_u32 {s(sZ)}, {s(sZ)}, {s(sT[0])}')
    A(f's_add_u32 {s(sZ)}, {s(sZ)}, {Z_OFF}')
    A(f's_lshl_b32 {s(sT[0])}, {s(sSeg)}, 1')
    A(f's_add_u32 {s(sT[0])}, {s(sT[0])}, {s(sQt)}')
    A(f's_lshl_b32 {s(sGo)}, {s(sT[0])}, 6')
    A(f's_add_u32 {s(sGo)}, {s(sGo)}, {G_OFF}')
    A(f's_mul_i32 {s(sRow)}, {s(sT[0])}, 20480')
    A(f's_lshl_b32 {s(sT[0])}, {s(sCol)}, 5')
    A(f's_add_u32 {s(sRow)}, {s(sRow)}, {s(sT[0])}')
    A('s_mov_b64 exec, 1')
    A(f's_lshl_b32 {s(sT[0])}, {s(sCol)}, 2')
    A(f's_add_u32 {s(sT[0])}, {s(sT[0])}, {FL_MISC + 256}')
    wait_word(A, pfx + '_z', t0, vL4, e.sWS, s(sT[0]), 'gt', 1, e.sCnt, fail, slp=8)
    A(f's_mov_b32 {s(sT[0])}, {FL_MISC + 128}')
    A(f's_mov_b32 {s(sT[1])}, 128')
    wait_word(A, pfx + '_g', t0, vL4, e.sWS, s(sT[0]), 'gt', s(sT[1]), e.sCnt, fail, slp=8)
    A('s_mov_b64 exec, -1')
    A(f's_mov_b32 {s(sRdy)}, 0')
    A.label(pfx + '_l')
    A(f'buffer_load_dwordx2 {v(vZ,2)}, {v(vLA)}, {s(e.sWS,4)}, {s(sZ)} offen sc1')
    A(f'buffer_load_dwordx2 {v(vX,2)}, {v(vXa)}, {s(sX,4)}, {s(sRow)} offen')
    A(f'buffer_load_dword {v(vG)}, {v(vGa)}, {s(e.sWS,4)}, {s(sGo)} offen sc1')
    A(f's_add_u32 {s(sNeed)}, {s(sSeg)}, 1')
    cached_wait(A, pfx + '_w', e, sRdy, s(sNeed), t0, vL4, s(sFl), 4, sT[0], fail)
    for k in range(1, 4):
        A(f's_add_u32 {s(sAP+k)}, {s(sAP)}, {10240*k}')
    for k in range(4):
        A(f'buffer_load_dwordx4 {v(vP+4*k,4)}, {v(vLA)}, {s(e.sWS,4)}, {s(sAP+k)} offen sc1')
    A('s_waitcnt vmcnt(4)')
    for i in range(2):
        A(f'v_lshlrev_b32 {v(vB+2*i)}, 16, {v(vZ+i)}')
        A(f'v_and_b32 {v(vB+2*i+1)}, 0xffff0000, {v(vZ+i)}')
        A(f'v_lshlrev_b32 {v(vB+4+2*i)}, 16, {v(vX+i)}')
        A(f'v_and_b32 {v(vB+4+2*i+1)}, 0xffff0000, {v(vX+i)}')
    A(f'v_sub_f32 {v(t1)}, 1.0, {v(vG)}')
    for r in range(4):
        A(f'v_mul_f32 {v(vB+r)}, {v(vB+r)}, {v(vB+4+r)}')
    for r in range(4):
        A(f'v_mul_f32 {v(vB+r)}, {v(vB+r)}, {v(t1)}')
    A('s_waitcnt vmcnt(0)')
    for r in range(4):
        A(f'v_add_f32 {v(vP+r)}, {v(vP+r)}, {v(vP+4+r)}')
        A(f'v_add_f32 {v(vP+8+r)}, {v(vP+8+r)}, {v(vP+12+r)}')
    for r in range(4):
        A(f'v_add_f32 {v(vP+r)}, {v(vP+r)}, {v(vP+8+r)}')
    for r in range(4):
        A(f'v_fmac_f32 {v(vB+r)}, {v(vP+r)}, {v(vG)}')
    A(f'v_cvt_pk_bf16_f32 {v(vP)}, {v(vB)}, {v(vB+1)}')
    A(f'v_cvt_pk_bf16_f32 {v(vP+1)}, {v(vB+2)}, {v(vB+3)}')
    A(f'buffer_store_dwordx2 {v(vP,2)}, {v(vXa)}, {s(sOut,4)}, {s(sRow)} offen')
    A(f's_add_u32 {s(sAP)}, {s(sAP)}, {3 * 32 * 10240}')
    A(f's_add_u32 {s(sZ)}, {s(sZ)}, 3072')
    A(f's_add_u32 {s(sGo)}, {s(sGo)}, {3 * 128}')
    A(f's_add_u32 {s(sRow)}, {s(sRow)}, {3 * 40960}')
    A(f's_add_u32 {s(sSeg)}, {s(sSeg)}, 3')
    A(f's_cmp_lt_u32 {s(sSeg)}, 64')
    A('s_waitcnt vmcnt(0)')
    A(f's_cbranch_scc1 {pfx}_l')
    A(f's_branch {done}')


def gen_post(A, e, fail='L_fail', done='L_exit'):
    sTask = e.sFree
    A.label('L_post')
    A(f's_mov_b32 {s(sTask)}, {s(e.sRole)}')
    A(f's_cmp_ge_u32 {s(sTask)}, 40')
    A('s_cbranch_scc1 L_post_g')
    gen_conv(A, e, sTask, fail)
    A('s_branch L_post_f')
    A.label('L_post_g')
    gen_gate(A, e, sTask, fail)
    A.label('L_post_f')
    gen_fin(A, e, sTask, fail, done)
```

```python
from common import *

LQ = 81920
LK = 94208


def cached_wait(A, name, e, sRdy, need, vtmp, vaddr, soff, lanes, sT, fail):
    A(f's_cmp_ge_u32 {s(sRdy)}, {need}')
    A(f's_cbranch_scc1 {name}_e')
    A(f's_mov_b64 exec, {(1 << lanes) - 1}')
    wait_word(A, name, vtmp, vaddr, e.sWS, soff, 'gt', need, e.sCnt, fail, slp=1)
    A(f'v_readlane_b32 {s(sRdy)}, {v(vtmp)}, 0')
    for i in range(1, lanes):
        A(f'v_readlane_b32 {s(sT)}, {v(vtmp)}, {i}')
        A(f's_min_u32 {s(sRdy)}, {s(sRdy)}, {s(sT)}')
    A('s_mov_b64 exec, -1')
    A.label(name + '_e')


def gen_qa(A, e, fail='L_fail', done='L_exit'):
    pfx = 'L_q'
    SA = Alloc(e.sFree, 102)
    sW = SA(4, 4); sX = SA(4, 4); sP = SA(4, 4)
    sH = SA(); sSeg = SA(); sSrc = SA(); sDst = [SA(), SA()]; sK = SA(); sV = SA(); sKM = SA(); sVM = SA(); sO = SA()
    sFl = SA(); sFlKV = SA(); sFlCh = SA(); sRkv = SA(); sRch = SA(); sNeed = SA(); sKd = SA(); sScale = SA()
    sT = [SA(), SA(), SA()]
    sMask = SA(16, 2)
    VA = Alloc(1, 256)
    vSrc = VA(10); vRd = VA(4); vLA = VA(); vL4 = VA(); vQW = VA(); vQR = VA(); vKR = VA(); vKMld = VA(); vZ = VA(); vNeg = VA()
    vt = [VA() for _ in range(8)]
    vE = VA(4)
    vXf = VA(24); vAcc = VA(24); vPk = VA(12)
    vQf = VA(24); vKf = VA(48); vKm = VA(24); vVf = VA(24); vVm = VA(14); vPx = VA(4); vPm = VA(4)
    vS = vXf
    vO = vAcc
    t0, t1 = vt[0], vt[1]

    def wreg(tl, t, hf):
        return a((tl * 20 + t) * 4 + 2 * hf, 2)

    def wfrag(tl, t):
        return a((tl * 20 + t) * 4, 4)
    A(f's_mov_b32 {s(sH)}, {s(e.sRole)}')
    A(f's_load_dwordx2 {s(sP,2)}, s[0:1], 16')
    A(f's_load_dwordx2 {s(sP+2,2)}, s[0:1], 0')
    A('s_waitcnt lgkmcnt(0)')
    srd(A, sW, sP, 7864320)
    srd(A, sX, sP + 2, 2621440)
    stage_w192(A, e, sW, sH, sT, vt, wreg, pfx)
    x_consts(A, e, vSrc, vRd, vt[0], vt[1], sT[0])
    A(f's_mul_i32 {s(sSrc)}, {s(e.sWave)}, 10240')
    A(f's_mov_b32 {s(sDst[0])}, {s(sSrc)}')
    A(f's_add_u32 {s(sDst[1])}, {s(sSrc)}, 40960')
    for g_ in x_dma(vSrc, sX, sSrc, sDst[0]):
        for x in g_:
            A(x)
    A(f's_add_u32 {s(sSrc)}, {s(sSrc)}, 40960')
    A(f'v_and_b32 {v(vL4)}, 63, v0')
    A(f'v_lshlrev_b32 {v(vLA)}, 4, {v(vL4)}')
    A(f'v_lshlrev_b32 {v(vL4)}, 2, {v(vL4)}')
    A(f'v_mov_b32 {v(vZ)}, 0')
    A(f'v_mov_b32 {v(vNeg)}, 0xff7fffff')
    for i in range(4):
        A(f'v_mov_b32 {v(vE+i)}, 0x3f803f80')
        A(f'v_mov_b32 {v(vPm+i)}, 0')
    for i in range(14):
        A(f'v_mov_b32 {v(vVm+i)}, 0')
    A(f's_mul_i32 {s(sT[0])}, {s(e.sWave)}, 3072')
    A(f's_add_u32 {s(sKd)}, {s(sT[0])}, {LK}')
    A(f's_add_u32 {s(sT[1])}, {s(sT[0])}, {LQ}')
    A(f'v_add_u32 {v(vQW)}, {s(sT[1])}, {v(vLA)}')
    A(f's_mul_i32 {s(sT[1])}, {s(sH)}, {SEG_H}')
    A(f's_add_u32 {s(sK)}, {s(sT[1])}, {s(sT[0])}')
    A(f's_add_u32 {s(sK)}, {s(sK)}, {KX_OFF}')
    A(f's_lshr_b32 {s(sT[0])}, {s(e.sWave)}, 1')
    A(f's_and_b32 {s(sT[2])}, {s(e.sWave)}, 1')
    A(f's_mul_i32 {s(sV)}, {s(sT[0])}, 6144')
    A(f's_add_u32 {s(sV)}, {s(sV)}, {s(sT[1])}')
    A(f's_add_u32 {s(sV)}, {s(sV)}, {VX_OFF}')
    A(f's_mul_i32 {s(sO)}, {s(sT[0])}, 3072')
    A(f's_add_u32 {s(sO)}, {s(sO)}, {s(sT[1])}')
    A(f's_mul_i32 {s(sKM)}, {s(sT[2])}, 6144')
    A(f's_add_u32 {s(sO)}, {s(sO)}, {s(sKM)}')
    A(f's_add_u32 {s(sO)}, {s(sO)}, {O_OFF}')
    A(f's_mul_i32 {s(sKM)}, {s(sH)}, 3072')
    A(f's_mul_i32 {s(sVM)}, {s(sT[0])}, 1536')
    A(f's_add_u32 {s(sVM)}, {s(sVM)}, {s(sKM)}')
    A(f's_add_u32 {s(sVM)}, {s(sVM)}, {VMO_OFF}')
    A(f's_add_u32 {s(sKM)}, {s(sKM)}, {KM_OFF}')
    A(f's_lshl_b32 {s(sT[1])}, {s(sT[2])}, 3')
    A(f's_add_u32 {s(sT[1])}, {s(sT[1])}, {LQ}')
    A(f'v_add_u32 {v(vQR)}, {s(sT[1])}, {v(vLA)}')
    A(f'v_add_u32 {v(vKR)}, {LK}, {v(vLA)}')
    A(f'v_bfe_u32 {v(t0)}, v0, 2, 2')
    A(f'v_and_b32 {v(t1)}, 1, v0')
    A(f'v_lshl_add_u32 {v(t0)}, {v(t0)}, 1, {v(t1)}')
    A(f'v_lshlrev_b32 {v(t0)}, 4, {v(t0)}')
    A(f'v_bfe_u32 {v(t1)}, v0, 4, 2')
    A(f'v_lshl_add_u32 {v(t0)}, {v(t1)}, 7, {v(t0)}')
    A(f'v_and_b32 {v(vt[2])}, 2, v0')
    A(f'v_cmp_eq_u32 vcc, 0, {v(vt[2])}')
    A(f'v_mov_b32 {v(vt[2])}, {OOB}')
    A(f'v_cndmask_b32 {v(vKMld)}, {v(vt[2])}, {v(t0)}, vcc')
    A(f's_lshl_b32 {s(sT[1])}, {s(sT[2])}, 4')
    A(f'v_and_b32 {v(t0)}, 15, v0')
    A(f'v_add_u32 {v(t0)}, {s(sT[1])}, {v(t0)}')
    A(f'v_lshlrev_b32 {v(t1)}, 2, {v(t1)}')
    for kt in range(2):
        for r in range(4):
            A(f'v_add_u32 {v(vt[2])}, {16*kt + r}, {v(t1)}')
            A(f'v_cmp_le_u32 {s(sMask + 2*(4*kt+r), 2)}, {v(vt[2])}, {v(t0)}')
    A(f's_lshl_b32 {s(sT[0])}, {s(sH)}, 7')
    A(f's_add_u32 {s(sFl)}, {s(sT[0])}, {FL_QA}')
    A(f's_add_u32 {s(sFlKV)}, {s(sT[0])}, {FL_KV}')
    A(f's_add_u32 {s(sFlCh)}, {s(sT[0])}, {FL_CH}')
    A(f's_mov_b32 {s(sRkv)}, 0')
    A(f's_mov_b32 {s(sRch)}, 0')
    A(f's_mov_b32 {s(sScale)}, {f32bits(SCALE_LOG2E):#x}')
    wait_go(A, pfx + '_go', e, vt[0], vt[1], fail)
    A(f's_mov_b32 {s(sSeg)}, 0')

    def publish():
        l = A.newlabel(pfx + '_p')
        A(f's_cmp_lg_u32 {s(e.sWave)}, 0')
        A(f's_cbranch_scc1 {l}')
        A(f'v_mov_b32 {v(t0)}, {s(sSeg)}')
        A('s_mov_b64 exec, 1')
        A(f'buffer_store_dword {v(t0)}, {v(vZ)}, {s(e.sWS,4)}, {s(sFl)} offen sc1')
        A('s_mov_b64 exec, -1')
        A.label(l)

    for b in range(2):
        A.label(f'{pfx}_seg{b}')
        A('s_barrier')
        buf = 40960 * b
        dma = x_dma(vSrc, sX, sSrc, sDst[b ^ 1])
        for t in range(2):
            for xt in range(2):
                A(x_read(vXf + 8 * t + 4 * xt, vRd, t, xt, buf))
        A(f's_add_u32 {s(sNeed)}, {s(sSeg)}, 1')
        cached_wait(A, f'{pfx}_kv{b}', e, sRkv, s(sNeed), t0, vL4, s(sFlKV), 2, sT[0], fail)
        A(f's_mov_b32 m0, {s(sKd)}')
        A(f's_add_u32 {s(sT[0])}, {s(sV)}, 3072')
        for i in range(3):
            A(f'buffer_load_dwordx4 {v(vLA)}, {s(e.sWS,4)}, {s(sK)} offen offset:{1024*i} sc1 lds')
        for u in range(6):
            A(f'buffer_load_dwordx4 {v(vVf+4*u,4)}, {v(vLA)}, {s(e.sWS,4)}, {s(sV if u < 3 else sT[0])} offen offset:{1024*(u%3)} sc1')
        for t in range(20):
            k = t % 3
            if t == 7:
                A('s_waitcnt vmcnt(16)')
                A('s_barrier')
                publish()
            if t + 2 < 20:
                for xt in range(2):
                    A(x_read(vXf + 8 * ((t + 2) % 3) + 4 * xt, vRd, t + 2, xt, buf))
            A(f's_waitcnt lgkmcnt({min(4, 2 * (19 - t))})')
            for tl in range(3):
                for xt in range(2):
                    acc = v(vAcc + 8 * tl + 4 * xt, 4)
                    A(f'v_mfma_f32_16x16x32_bf16 {acc}, {wfrag(tl, t)}, {v(vXf + 8*k + 4*xt, 4)}, {acc if t else 0}')
                if tl == 0 and dma:
                    for x in dma.pop(0):
                        A(x)
        A(f's_add_u32 {s(sSrc)}, {s(sSrc)}, 40960')
        A(f's_add_u32 {s(sK)}, {s(sK)}, {SEG_ALL}')
        A(f's_add_u32 {s(sV)}, {s(sV)}, {SEG_ALL}')
        for tl in range(3):
            for q in range(4):
                A(f'v_cvt_pk_bf16_f32 {v(vPk+4*tl+q)}, {v(vAcc+8*tl+2*q)}, {v(vAcc+8*tl+2*q+1)}')
            A(f'ds_write_b128 {v(vQW)}, {v(vPk+4*tl,4)} offset:{1024*tl}')
        A('s_waitcnt vmcnt(0) lgkmcnt(0)')
        A('s_barrier')
        for tl in range(12):
            A(f'ds_read_b64 {v(vQf+2*tl,2)}, {v(vQR)} offset:{1024*tl}')
        cached_wait(A, f'{pfx}_ch{b}', e, sRch, s(sNeed), t0, vL4, s(sFlCh), 3, sT[0], fail)
        for ks in range(6):
            A(f'buffer_load_dwordx4 {v(vKm+4*ks,4)}, {v(vKMld)}, {s(e.sWS,4)}, {s(sKM)} offen offset:{512*ks} sc1')
        for u in range(6):
            A(f'buffer_load_dword {v(vVm+2*u)}, {v(vL4)}, {s(e.sWS,4)}, {s(sVM)} offen offset:{256*u} sc1')
        A(f's_add_u32 {s(sKM)}, {s(sKM)}, {32 * 3072}')
        A(f's_add_u32 {s(sVM)}, {s(sVM)}, {32 * 3072}')
        A('s_waitcnt lgkmcnt(0)')
        for kt in range(2):
            for tl in range(12):
                A(f'ds_read_b64 {v(vKf+24*kt+2*tl,2)}, {v(vKR)} offset:{1024*tl + 8*kt}')
                if kt == 1 and tl % 2 == 1:
                    A('s_waitcnt lgkmcnt(12)')
                    ks = tl // 2
                    A(f'v_mfma_f32_16x16x32_bf16 {v(vS+4,4)}, {v(vKf+4*ks,4)}, {v(vQf+4*ks,4)}, {v(vS+4,4) if ks else 0}')
        for ks in range(6):
            A(f's_waitcnt lgkmcnt({10 - 2*ks})')
            A(f'v_mfma_f32_16x16x32_bf16 {v(vS+8,4)}, {v(vKf+24+4*ks,4)}, {v(vQf+4*ks,4)}, {v(vS+8,4) if ks else 0}')
        for ks in range(6):
            A(f's_waitcnt vmcnt({11 - ks})')
            A(f'v_mfma_f32_16x16x32_bf16 {v(vS,4)}, {v(vKm+4*ks,4)}, {v(vQf+4*ks,4)}, {v(vS,4) if ks else 0}')
        for i in range(8):
            A(f'v_cndmask_b32 {v(vS+4+i)}, {v(vNeg)}, {v(vS+4+i)}, {s(sMask+2*i,2)}')
        A(f'v_max3_f32 {v(t0)}, {v(vS+4)}, {v(vS+5)}, {v(vS+6)}')
        A(f'v_max3_f32 {v(t1)}, {v(vS+7)}, {v(vS+8)}, {v(vS+9)}')
        A(f'v_max3_f32 {v(t0)}, {v(t0)}, {v(vS+10)}, {v(vS+11)}')
        A(f'v_max3_f32 {v(t1)}, {v(t1)}, {v(vS)}, {v(vS+1)}')
        A(f'v_max_f32 {v(t0)}, {v(t0)}, {v(t1)}')
        for sw in (16, 32):
            A(f'v_mov_b32 {v(t1)}, {v(t0)}')
            A(f'v_permlane{sw}_swap_b32 {v(t0)}, {v(t1)}')
            A(f'v_max_f32 {v(t0)}, {v(t0)}, {v(t1)}')
        A(f'v_mul_f32 {v(t0)}, {s(sScale)}, {v(t0)}')
        live = [vS, vS + 1] + list(range(vS + 4, vS + 12))
        for r in live:
            A(f'v_fma_f32 {v(r)}, {v(r)}, {s(sScale)}, -{v(t0)}')
        for r in live:
            A(f'v_exp_f32 {v(r)}, {v(r)}')
        for q in range(4):
            A(f'v_cvt_pk_bf16_f32 {v(vPx+q)}, {v(vS+4+2*q)}, {v(vS+5+2*q)}')
        A(f'v_cvt_pk_bf16_f32 {v(vPm)}, {v(vS)}, {v(vS+1)}')
        vL = vS + 12
        A(f'v_mfma_f32_16x16x32_bf16 {v(vL,4)}, {v(vE,4)}, {v(vPx,4)}, 0')
        A(f'v_mfma_f32_16x16x32_bf16 {v(vL,4)}, {v(vE,4)}, {v(vPm,4)}, {v(vL,4)}')
        for u in range(6):
            A(f'v_mfma_f32_16x16x32_bf16 {v(vO+4*u,4)}, {v(vVf+4*u,4)}, {v(vPx,4)}, 0')
        A('s_waitcnt vmcnt(0)')
        for u in range(6):
            A(f'v_mfma_f32_16x16x32_bf16 {v(vO+4*u,4)}, {v(vVm+2*u,4)}, {v(vPm,4)}, {v(vO+4*u,4)}')
        A(f'v_rcp_f32 {v(t0)}, {v(vL)}')
        for ks in range(3):
            for i in range(8):
                A(f'v_mul_f32 {v(vO+8*ks+i)}, {v(vO+8*ks+i)}, {v(t0)}')
            for q in range(4):
                A(f'v_cvt_pk_bf16_f32 {v(vPk+4*ks+q)}, {v(vO+8*ks+2*q)}, {v(vO+8*ks+2*q+1)}')
            A(f'buffer_store_dwordx4 {v(vPk+4*ks,4)}, {v(vLA)}, {s(e.sWS,4)}, {s(sO)} offen offset:{1024*ks} sc1')
        A(f's_add_u32 {s(sO)}, {s(sO)}, {SEG_ALL}')
        A(f's_add_u32 {s(sSeg)}, {s(sSeg)}, 1')
        if b == 1:
            A(f's_cmp_lt_u32 {s(sSeg)}, 64')
            A(f's_cbranch_scc1 {pfx}_seg0')
    A('s_waitcnt vmcnt(0)')
    A('s_barrier')
    publish()
    A('s_waitcnt vmcnt(0)')
    A(f's_branch {done}')
```

```python
from common import *
from role_qa import cached_wait


def gen_wo(A, e, fail='L_fail', done='L_exit'):
    pfx = 'L_o'
    SA = Alloc(e.sFree, 102)
    sW = SA(4, 4); sP = SA(2, 2)
    sKq = SA(); sCs = SA(); sSeg = SA(); sO = SA(4); sAP = SA(); sFl = SA(); sFlQ = SA(); sRdy = SA(); sNeed = SA()
    sT = [SA(), SA(), SA()]
    VA = Alloc(1, 256)
    vLA = VA(); vZ = VA(); vQa = VA(); vRW = VA(); vRR = VA(); vSt2 = VA()
    vt = VA(10); vt = list(range(vt, vt + 10))
    vB = VA(96); vAcc = VA(40); vR = VA(48)
    t0, t1 = vt[0], vt[1]

    def wfrag(ct, ks):
        return a((ct * 12 + ks) * 4, 4)
    A(f's_and_b32 {s(sKq)}, {s(e.sRole)}, 3')
    A(f's_lshr_b32 {s(sCs)}, {s(e.sRole)}, 2')
    A(f's_load_dwordx2 {s(sP,2)}, s[0:1], 40')
    A('s_waitcnt lgkmcnt(0)')
    srd(A, sW, sP, 7864320)
    A(f'v_and_b32 {v(vLA)}, 63, v0')
    vSrc = vt[2]; vRd = vt[3:9]
    A(f'v_mul_u32_u24 {v(t0)}, 6554, {v(vLA)}')
    A(f'v_lshrrev_b32 {v(t0)}, 16, {v(t0)}')
    A(f'v_mul_u32_u24 {v(t1)}, 10, {v(t0)}')
    A(f'v_sub_u32 {v(t1)}, {v(vLA)}, {v(t1)}')
    A(f'v_mul_u32_u24 {v(t0)}, 1280, {v(t0)}')
    A(f'v_lshl_add_u32 {v(t0)}, {v(t1)}, 4, {v(t0)}')
    A(f'v_cmp_gt_u32 vcc, 60, {v(vLA)}')
    A(f'v_mov_b32 {v(t1)}, {OOB}')
    A(f'v_cndmask_b32 {v(vSrc)}, {v(t1)}, {v(t0)}, vcc')
    A(f's_lshl_b32 {s(sT[2])}, {s(e.sWave)}, 15')
    for k in range(6):
        A(f'v_bfe_u32 {v(t0)}, v0, 2, 4')
        A(f'v_add_u32 {v(t0)}, {16*k}, {v(t0)}')
        A(f'v_mul_u32_u24 {v(t1)}, 10923, {v(t0)}')
        A(f'v_lshrrev_b32 {v(t1)}, 16, {v(t1)}')
        A(f'v_mul_u32_u24 {v(t0)}, 160, {v(t0)}')
        A(f'v_lshl_add_u32 {v(t0)}, {v(t1)}, 6, {v(t0)}')
        A(f'v_and_b32 {v(t1)}, 3, v0')
        A(f'v_lshl_add_u32 {v(t0)}, {v(t1)}, 3, {v(t0)}')
        A(f'v_add_u32 {v(vRd[k])}, {s(sT[2])}, {v(t0)}')
    A(f'v_lshlrev_b32 {v(vLA)}, 4, {v(vLA)}')
    A(f's_lshl_b32 {s(sT[0])}, {s(sKq)}, 2')
    A(f's_add_u32 {s(sT[0])}, {s(sT[0])}, {s(e.sWave)}')
    A(f's_mul_i32 {s(sO)}, {s(sT[0])}, {2 * SEG_H}')
    A(f's_lshl_b32 {s(sFlQ)}, {s(sT[0])}, 8')
    A(f's_mul_i32 {s(sT[0])}, {s(sT[0])}, {384 * 1280}')
    A(f's_mul_i32 {s(sT[1])}, {s(sCs)}, 160')
    A(f's_add_u32 {s(sT[0])}, {s(sT[0])}, {s(sT[1])}')

    def issue(p):
        for i in range(16):
            A(f's_add_u32 m0, {s(sT[2])}, {(p & 1) * 16384 + 1024 * i}')
            A('s_nop 0')
            A(f'buffer_load_dwordx4 {v(vSrc)}, {s(sW,4)}, {s(sT[0])} offen lds')
            A(f's_add_u32 {s(sT[0])}, {s(sT[0])}, {6 * 1280}')
    issue(0)
    issue(1)
    for p in range(4):
        A(f's_waitcnt vmcnt({16 if p < 3 else 0})')
        for k in range(6):
            for ct in range(5):
                A(f'ds_read_b64_tr_b16 {a((ct*12 + 3*p + k//2)*4 + 2*(k&1), 2)}, {v(vRd[k])} offset:{(p & 1)*16384 + 32*ct}')
            A('s_waitcnt lgkmcnt(5)')
        A('s_waitcnt lgkmcnt(0)')
        if p + 2 < 4:
            issue(p + 2)
    A(f's_add_u32 {s(sO)}, {s(sO)}, {O_OFF}')
    A(f's_add_u32 {s(sFlQ)}, {s(sFlQ)}, {FL_QA}')
    A(f'v_lshlrev_b32 {v(vQa)}, 3, {v(vLA)}')
    A(f'v_mov_b32 {v(vZ)}, 0')
    A(f's_lshl_b32 {s(sAP)}, {s(sCs)}, 2')
    A(f's_add_u32 {s(sAP)}, {s(sAP)}, {s(sKq)}')
    A(f's_mul_i32 {s(sAP)}, {s(sAP)}, 10240')
    A(f's_lshl_b32 {s(sT[0])}, {s(e.sWave)}, 10')
    A(f's_add_u32 {s(sAP)}, {s(sAP)}, {s(sT[0])}')
    A(f's_add_u32 {s(sAP)}, {s(sAP)}, {AP_OFF}')
    A(f'v_add_u32 {v(vRR)}, {s(sT[0])}, {v(vLA)}')
    A(f's_mul_i32 {s(sT[0])}, {s(e.sWave)}, 10240')
    A(f'v_add_u32 {v(vRW)}, {s(sT[0])}, {v(vLA)}')
    A(f'v_add_u32 {v(t0)}, 8192, {v(vLA)}')
    A(f'v_mov_b32 {v(t1)}, {OOB}')
    A(f's_cmp_lt_u32 {s(e.sWave)}, 2')
    A('s_cselect_b64 vcc, -1, 0')
    A(f'v_cndmask_b32 {v(vSt2)}, {v(t1)}, {v(t0)}, vcc')
    A(f's_lshl_b32 {s(sFl)}, {s(sCs)}, 7')
    A(f's_lshl_b32 {s(sT[0])}, {s(e.sWave)}, 4')
    A(f's_add_u32 {s(sFl)}, {s(sFl)}, {s(sT[0])}')
    A(f's_lshl_b32 {s(sT[0])}, {s(sKq)}, 2')
    A(f's_add_u32 {s(sFl)}, {s(sFl)}, {s(sT[0])}')
    A(f's_add_u32 {s(sFl)}, {s(sFl)}, {FL_WO}')
    A(f's_mov_b32 {s(sRdy)}, 0')
    wait_go(A, pfx + '_go', e, t0, t1, fail)
    A('s_barrier')
    A(f's_mov_b32 {s(sSeg)}, 0')

    def publish():
        A(f'v_mov_b32 {v(t0)}, {s(sSeg)}')
        A('s_mov_b64 exec, 1')
        A(f'buffer_store_dword {v(t0)}, {v(vZ)}, {s(e.sWS,4)}, {s(sFl)} offen sc1')
        A('s_mov_b64 exec, -1')

    for b in range(2):
        A.label(f'{pfx}_seg{b}')
        A(f's_add_u32 {s(sNeed)}, {s(sSeg)}, 1')
        A(f's_cmp_ge_u32 {s(sRdy)}, {s(sNeed)}')
        A(f's_cbranch_scc1 {pfx}_rdy{b}')
        A('s_waitcnt vmcnt(0)')
        publish()
        cached_wait(A, f'{pfx}_qa{b}', e, sRdy, s(sNeed), t0, vQa, s(sFlQ), 2, sT[0], fail)
        A.label(f'{pfx}_rdy{b}')
        for i in range(1, 4):
            A(f's_add_u32 {s(sO+i)}, {s(sO)}, {6144 * i}')
        order = [(hh, ks, qt) for hh in range(2) for ks in range(6) for qt in range(2)]
        for i, (hh, ks, qt) in enumerate(order):
            base = sO + 2 * hh + qt
            if ks < 4:
                A(f'buffer_load_dwordx4 {v(vB+4*i,4)}, {v(vLA)}, {s(e.sWS,4)}, {s(base)} offen offset:{1024*ks} sc1')
            else:
                A(f's_add_u32 {s(sT[0])}, {s(base)}, 4096')
                A(f'buffer_load_dwordx4 {v(vB+4*i,4)}, {v(vLA)}, {s(e.sWS,4)}, {s(sT[0])} offen offset:{1024*(ks-4)} sc1')
        A(f's_add_u32 {s(sO)}, {s(sO)}, {SEG_ALL}')
        for i, (hh, ks, qt) in enumerate(order):
            A(f's_waitcnt vmcnt({23 - i + (1 if i else 0)})')
            if i == 0:
                publish()
            for ct in range(5):
                acc = v(vAcc + 20 * qt + 4 * ct, 4)
                A(f'v_mfma_f32_16x16x32_bf16 {acc}, {wfrag(ct, 6*hh+ks)}, {v(vB+4*i,4)}, {acc if i > 1 else 0}')
        lb = 40960 * b
        for tl in range(10):
            A(f'ds_write_b128 {v(vRW)}, {v(vAcc+4*tl,4)} offset:{lb + 1024*tl}')
        A('s_waitcnt lgkmcnt(0)')
        A('s_barrier')
        A(f'v_add_u32 {v(t1)}, {lb}, {v(vRR)}')
        for k in range(3):
            for src in range(4):
                A(f'ds_read_b128 {v(vR+16*k+4*src,4)}, {v(t1)} offset:{10240*src + 4096*k}')
        A(f's_add_u32 {s(sT[0])}, {s(sAP)}, 4096')
        for k in range(3):
            A(f's_waitcnt lgkmcnt({8 - 4*k})')
            r = vR + 16 * k
            for i in (0, 2):
                A(f'v_pk_add_f32 {v(r+i,2)}, {v(r+i,2)}, {v(r+4+i,2)}')
                A(f'v_pk_add_f32 {v(r+8+i,2)}, {v(r+8+i,2)}, {v(r+12+i,2)}')
            for i in (0, 2):
                A(f'v_pk_add_f32 {v(r+i,2)}, {v(r+i,2)}, {v(r+8+i,2)}')
            A(f'buffer_store_dwordx4 {v(r,4)}, {v(vLA if k < 2 else vSt2)}, {s(e.sWS,4)}, {s(sT[0] if k == 1 else sAP)} offen sc1')
        A(f's_add_u32 {s(sAP)}, {s(sAP)}, {32 * 10240}')
        A(f's_add_u32 {s(sSeg)}, {s(sSeg)}, 1')
        if b == 1:
            A(f's_cmp_lt_u32 {s(sSeg)}, 64')
            A(f's_cbranch_scc1 {pfx}_seg0')
    A('s_waitcnt vmcnt(0)')
    publish()
    A('s_waitcnt vmcnt(0)')
    A(f's_branch {done}')
```

```python
import sys, os
from common import *
import role_chain, role_kv, role_qa, role_wo, role_post

NAME = 'gated_mix__memory_aug_recurrent_mem_tr__ssm_conv_h3__prompt_kernel'
LDS = 163840


def counts(A, name, e, vt, va, sdst, scnt, fail):
    A(f'v_and_b32 {v(va)}, 15, v0')
    A(f'v_lshlrev_b32 {v(va)}, 2, {v(va)}')
    A(f's_mov_b32 {s(scnt)}, 0')
    A.label(name)
    A(f'buffer_load_dword {v(vt)}, {v(va)}, {s(e.sDBG,4)}, 0 offen sc1')
    A('s_waitcnt vmcnt(0)')
    for i in range(9):
        A(f'v_readlane_b32 {s(sdst+i)}, {v(vt)}, {i}')
    A(f's_mov_b32 {s(sdst+9)}, {s(sdst)}')
    for i in range(1, 9):
        A(f's_add_u32 {s(sdst+9)}, {s(sdst+9)}, {s(sdst+i)}')
    A(f's_cmp_ge_u32 {s(sdst+9)}, 256')
    A(f's_cbranch_scc1 {name}_ok')
    A('s_sleep 4')
    A(f's_add_u32 {s(scnt)}, {s(scnt)}, 1')
    A(f's_cmp_lt_u32 {s(scnt)}, 0x40000')
    A(f's_cbranch_scc1 {name}')
    A(f's_branch {fail}')
    A.label(name + '_ok')


def body(chain_kw={}, fake_xcc=None):
    A = Asm()
    e = Env()
    SC = 90 if not chain_kw.get('cyc') else 24

    def mode(A, sSlow, t0, t1, t2, sT, fail):
        counts(A, 'L_ch_cnt', e, t0, t1, SC, e.sCnt, fail)
        A(f's_min_u32 {s(SC)}, {s(SC)}, {s(SC+1)}')
        A(f's_min_u32 {s(SC)}, {s(SC)}, {s(SC+2)}')
        A(f's_min_u32 {s(SC)}, {s(SC)}, {s(SC+3)}')
        A(f's_cmp_lt_u32 {s(SC)}, 24')
        A(f's_cselect_b32 {s(sSlow)}, 1, 0')
    e.mode = mode
    sX, sR, sT, sU = 20, 21, 22, 23
    A('s_cmp_ge_u32 s2, 256')
    A('s_cbranch_scc1 L_exit')
    A('s_load_dwordx4 s[16:19], s[0:1], 120')
    if fake_xcc is None:
        A(f's_getreg_b32 {s(sX)}, hwreg(HW_REG_XCC_ID, 0, 4)')
    else:
        fake_xcc(A, sX)
    A('v_lshrrev_b32 v1, 6, v0')
    A(f'v_readfirstlane_b32 {s(e.sWave)}, v1')
    A(f's_min_u32 {s(sX)}, {s(sX)}, 8')
    A('s_waitcnt lgkmcnt(0)')
    srd(A, e.sDBG, 16, 256)
    srd(A, e.sWS, 18, WS_BYTES)

    def ticket(name, saddr):
        A('v_mov_b32 v1, 1')
        A(f'v_mov_b32 v2, {saddr}')
        A('v_mov_b32 v3, 0')
        A(f's_cmp_lg_u32 {s(e.sWave)}, 0')
        A(f's_cbranch_scc1 {name}')
        A('s_mov_b64 exec, 1')
        A(f'buffer_atomic_add v1, v2, {s(e.sDBG,4)}, 0 offen sc0 sc1')
        A('s_waitcnt vmcnt(0)')
        A('ds_write_b32 v3, v1')
        A('s_waitcnt lgkmcnt(0)')
        A('s_mov_b64 exec, -1')
        A.label(name)
        A('s_barrier')
        A('ds_read_b32 v1, v3')
        A('s_waitcnt lgkmcnt(0)')
        A(f'v_readfirstlane_b32 {s(sR)}, v1')
        A('s_barrier')
    A(f's_lshl_b32 {s(sT)}, {s(sX)}, 2')
    ticket('L_tk0', s(sT))
    A(f's_cmp_lt_u32 {s(sX)}, 4')
    A(f's_cselect_b32 {s(sT)}, 24, 32')
    A(f's_cmp_lt_u32 {s(sX)}, 8')
    A(f's_cselect_b32 {s(sT)}, {s(sT)}, 0')
    A(f's_cmp_lt_u32 {s(sR)}, {s(sT)}')
    A('s_cbranch_scc1 L_have_role')
    counts(A, 'L_sp_cnt', e, 1, 2, SC, e.sCnt, 'L_fail')
    for x in range(8):
        A(f's_min_u32 {s(SC+x)}, {s(SC+x)}, {24 if x < 4 else 32}')
    A(f's_mov_b32 {s(sT)}, 0')
    for x in range(8):
        A(f's_add_u32 {s(sT)}, {s(sT)}, {s(SC+x)}')
    A(f's_cmp_eq_u32 {s(sT)}, 224')
    A('s_cbranch_scc1 L_exit')
    ticket('L_tk1', 40)
    for x in range(8):
        A(f's_sub_u32 {s(sT)}, {24 if x < 4 else 32}, {s(SC+x)}')
        A(f's_mov_b32 {s(sX)}, {x}')
        A(f's_add_u32 {s(sU)}, {s(sR)}, {s(SC+x)}')
        A(f's_cmp_lt_u32 {s(sR)}, {s(sT)}')
        A('s_cbranch_scc1 L_took')
        A(f's_sub_u32 {s(sR)}, {s(sR)}, {s(sT)}')
    A('s_branch L_exit')
    A.label('L_took')
    A(f's_mov_b32 {s(sR)}, {s(sU)}')
    A.label('L_have_role')
    A(f's_cmp_ge_u32 {s(sX)}, 4')
    A('s_cbranch_scc1 L_worker')
    A(f's_mul_i32 {s(e.sRole)}, {s(sX)}, 24')
    A(f's_add_u32 {s(e.sRole)}, {s(e.sRole)}, {s(sR)}')
    role_chain.gen_chain(A, e, e.sFree, **chain_kw)
    A.label('L_worker')
    A(f's_sub_u32 {s(sX)}, {s(sX)}, 4')
    A(f's_lshl_b32 {s(e.sRole)}, {s(sX)}, 3')
    A(f's_lshr_b32 {s(sT)}, {s(sR)}, 2')
    A(f's_add_u32 {s(e.sRole)}, {s(e.sRole)}, {s(sT)}')
    A(f's_and_b32 {s(sR)}, {s(sR)}, 3')
    A(f's_cmp_eq_u32 {s(sR)}, 1')
    A('s_cbranch_scc1 L_role_v')
    A(f's_cmp_eq_u32 {s(sR)}, 2')
    A('s_cbranch_scc1 L_role_qa')
    A(f's_cmp_eq_u32 {s(sR)}, 3')
    A('s_cbranch_scc1 L_role_wo')
    role_kv.gen_kv(A, e, False, done='L_post')
    A.label('L_role_v')
    A(f's_add_u32 {s(e.sRole)}, {s(e.sRole)}, 32')
    role_kv.gen_kv(A, e, True, done='L_post')
    role_post.gen_post(A, e)
    A.label('L_role_qa')
    role_qa.gen_qa(A, e)
    A.label('L_role_wo')
    role_wo.gen_wo(A, e)
    A.label('L_fail')
    A('s_mov_b64 exec, -1')
    A('v_mov_b32 v1, 0xdead')
    A(f'v_mov_b32 v2, {DBG_FAIL}')
    A(f'buffer_store_dword v1, v2, {s(e.sDBG,4)}, 0 offen sc1')
    A('s_waitcnt vmcnt(0)')
    A.label('L_exit')
    A('s_endpgm')
    return A.finalize()


def whole(**kw):
    here = os.path.dirname(os.path.abspath(__file__))
    ref = open(os.path.join(here, '..', 'cdna_kernels', NAME[:-7] + '.s.ref')).read()
    head = ref[:ref.index('; Override launch geometry')]
    head += f'; @launch grid=(256,1,1) block=(256,1,1) lds={LDS}\n'
    head += ('; One persistent launch, one workgroup per CU, five roles picked at run time (generated by tools/gen_all.py):\n'
             ';   chain  96 WGs  the sequential memory recurrence, weights resident in registers\n'
             ';   K, V   64 WGs  x Wk / x Wv per head; afterwards the long convolution, the gate and the final mix\n'
             ';   QA     32 WGs  x Wq and the attention of the token rows\n'
             ';   WO     32 WGs  the output projection\n')
    txt = head + '.amdgcn_target "amdgcn-amd-amdhsa--gfx950"\n.text\n'
    txt += f'.globl {NAME}\n.p2align 8\n.type {NAME},@function\n{NAME}:\n' + body(**kw)
    txt += f'''.section .rodata,"a"
.p2align 6
.amdhsa_kernel {NAME}
  .amdhsa_next_free_vgpr 512
  .amdhsa_next_free_sgpr 102
  .amdhsa_accum_offset 256
  .amdhsa_group_segment_fixed_size 0
  .amdhsa_kernarg_size 136
  .amdhsa_user_sgpr_count 2
  .amdhsa_user_sgpr_kernarg_segment_ptr 1
  .amdhsa_system_sgpr_workgroup_id_x 1
.end_amdhsa_kernel
'''
    return txt


if __name__ == '__main__':
    out = sys.argv[1] if len(sys.argv) > 1 else os.path.join(os.path.dirname(os.path.abspath(__file__)), '..', 'cdna_kernels', NAME[:-7] + '.s')
    kw = eval(sys.argv[2]) if len(sys.argv) > 2 else {}
    t = whole(**kw)
    open(out, 'w').write(t)
    print('wrote', out, len(t), 'bytes')
```

```python
import struct
from asmlib import Asm, Alloc, v, a, s

WS_BYTES = 268435456
OOB = 0x80000000
SEG_H = 12288
SEG_ALL = 32 * SEG_H

KX_OFF = 0x0000000
VX_OFF = 0x1800000
S_OFF = 0x3000000
S_SH = 17
VM_OFF = 0x3080000
VM_SH = 17
M_OFF = 0x3100000
M_SH = 16
PROBE_OFF = 0x3180000
FL_OFF = 0x31C0000
FL_KV = FL_OFF + 0x2000
FL_QA = FL_OFF + 0x3000
FL_WO = FL_OFF + 0x6000
FL_CH = FL_OFF + 0x8000
FL_MISC = FL_OFF + 0xC000
FL_CLEAR = list(range(0, 0x4400, 1024)) + [0x6000] + list(range(0x8000, 0x9000, 1024)) + list(range(0xA000, 0xB000, 1024)) + [0xC000]
G_OFF = 0x3200000
Z_OFF = 0x3300000
MLOG_OFF = 0x3800000
TRACE_OFF = 0x38F0000
TL_OFF = 0x3900000
MARK_OFF = 0x3A00000
KM_OFF = 0x4000000
VMO_OFF = 0x4800000
CF_OFF = 0x5000000
O_OFF = 0x8000000
AP_OFF = 0x9800000

DBG_GO = 48
DBG_PAR = 240
DBG_ARR = 112
DBG_TK2 = 176
DBG_FAIL = 60

SCALE_LOG2E = (192 ** -0.5) * 1.4426950408889634


def f32bits(x):
    return struct.unpack('<I', struct.pack('<f', x))[0]


def srd(A, d, base, nbytes):
    A(f's_mov_b32 {s(d)}, {s(base)}')
    A(f's_mov_b32 {s(d+1)}, {s(base+1)}')
    A(f's_mov_b32 {s(d+2)}, {nbytes}')
    A(f's_mov_b32 {s(d+3)}, 0x20000')


def delay(A, cyc):
    q = cyc // 4
    while q > 0:
        c = min(q, 16)
        A(f's_nop {c-1}')
        q -= c


def sleep(A, cyc):
    if cyc >= 64:
        A(f's_sleep {cyc // 64}')
    delay(A, cyc % 64)


def c_base(A, dst, step, par, t1, t2):
    A(f's_mul_i32 {s(t1)}, {s(step)}, 0x5556')
    A(f's_lshr_b32 {s(t1)}, {s(t1)}, 16')
    A(f's_mul_i32 {s(t2)}, {s(t1)}, 3')
    A(f's_sub_u32 {s(t2)}, {s(step)}, {s(t2)}')
    A(f's_mul_i32 {s(t2)}, {s(t2)}, 655360')
    A(f's_lshl_b32 {s(dst)}, {s(t1)}, 21')
    A(f's_add_u32 {s(dst)}, {s(dst)}, {s(t2)}')
    A(f's_xor_b32 {s(t1)}, {s(t1)}, {s(par)}')
    A(f's_and_b32 {s(t1)}, {s(t1)}, 1')
    A(f's_lshl_b32 {s(t1)}, {s(t1)}, 13')
    A(f's_add_u32 {s(dst)}, {s(dst)}, {s(t1)}')
    A(f's_add_u32 {s(dst)}, {s(dst)}, {CF_OFF}')


class Env:
    sWS = 4
    sDBG = 8
    sWave = 12
    sRole = 13
    sPar = 14
    sCnt = 15
    sFree = 16
    marks = False

    def mark(self, A, i, va, vb):
        if not self.marks:
            return
        A('s_memrealtime s[100:101]')
        A(f'v_mov_b32 {v(vb)}, s2')
        A(f'v_lshlrev_b32 {v(vb)}, 6, {v(vb)}')
        A(f'v_add_u32 {v(vb)}, {MARK_OFF + 4 * i}, {v(vb)}')
        A('s_waitcnt lgkmcnt(0)')
        A(f'v_mov_b32 {v(va)}, s100')
        A(f'buffer_store_dword {v(va)}, {v(vb)}, {s(self.sWS,4)}, 0 offen')


def wait_word(A, name, vtmp, vaddr, srdreg, soff, cmp, sval, scnt, fail, limit=0x40000, slp=2):
    A(f's_mov_b32 {s(scnt)}, 0')
    A.label(name)
    A(f'buffer_load_dword {v(vtmp)}, {v(vaddr)}, {s(srdreg,4)}, {soff} offen sc1')
    A('s_waitcnt vmcnt(0)')
    A(f'v_cmp_{cmp}_u32 vcc, {sval}, {v(vtmp)}')
    A(f's_cbranch_vccz {name}_ok')
    if slp:
        A(f's_sleep {slp}')
    A(f's_add_u32 {s(scnt)}, {s(scnt)}, 1')
    A(f's_cmp_lt_u32 {s(scnt)}, {limit}')
    A(f's_cbranch_scc1 {name}')
    A(f's_branch {fail}')
    A.label(name + '_ok')


def fl_place(A, e, regs, st):
    A(f's_lshl_b32 {s(st)}, {s(e.sPar)}, 13')
    for r in regs:
        A(f's_xor_b32 {s(r)}, {s(r)}, {s(st)}')


def wait_go(A, name, e, va, vb, fail, par=True):
    A(f'v_mov_b32 {v(va)}, {DBG_GO}')
    if par:
        A(f's_mov_b32 {s(e.sPar)}, {DBG_PAR}')
        A(f'v_writelane_b32 {v(va)}, {s(e.sPar)}, 0')
    wait_word(A, name, vb, va, e.sDBG, 0, 'eq', 0, e.sCnt, fail)
    if par:
        A(f'v_readfirstlane_b32 {s(e.sPar)}, {v(vb)}')
        A(f's_sub_u32 {s(e.sPar)}, {s(e.sPar)}, 1')


def stage_w192(A, e, sW, sH, sT, vt, wreg, pfx, lds0=0, last=None):
    vS = vt[0:3]; vRd = vt[3:6]; x, y = vt[6], vt[7]
    for i in range(3):
        A(f'v_and_b32 {v(x)}, 63, v0')
        A(f'v_add_u32 {v(x)}, {64*i}, {v(x)}')
        A(f'v_mul_u32_u24 {v(y)}, 2731, {v(x)}')
        A(f'v_lshrrev_b32 {v(y)}, 16, {v(y)}')
        A(f'v_mul_u32_u24 {v(vS[i])}, 24, {v(y)}')
        A(f'v_sub_u32 {v(x)}, {v(x)}, {v(vS[i])}')
        A(f'v_mul_u32_u24 {v(vS[i])}, 12288, {v(y)}')
        A(f'v_and_b32 {v(y)}, 2, {v(y)}')
        A(f's_and_b32 {s(sT[0])}, {s(e.sWave)}, 1')
        A(f's_lshl_b32 {s(sT[0])}, {s(sT[0])}, 2')
        A(f'v_or_b32 {v(y)}, {s(sT[0])}, {v(y)}')
        A(f'v_xor_b32 {v(x)}, {v(x)}, {v(y)}')
        A(f'v_lshl_add_u32 {v(vS[i])}, {v(x)}, 4, {v(vS[i])}')
    A(f'v_bfe_u32 {v(x)}, v0, 3, 1')
    A(f'v_bfe_u32 {v(y)}, v0, 4, 1')
    A(f'v_lshl_or_b32 {v(x)}, {v(y)}, 1, {v(x)}')
    for tl in range(3):
        A(f's_mul_i32 {s(sT[0])}, {s(e.sWave)}, 3')
        A(f's_add_u32 {s(sT[0])}, {s(sT[0])}, {tl}')
        A(f'v_xor_b32 {v(vRd[tl])}, {s(sT[0])}, {v(x)}')
        A(f'v_lshlrev_b32 {v(vRd[tl])}, 5, {v(vRd[tl])}')
    A(f'v_bfe_u32 {v(x)}, v0, 4, 2')
    A(f'v_bfe_u32 {v(y)}, v0, 2, 2')
    A(f'v_lshl_add_u32 {v(x)}, {v(x)}, 3, {v(y)}')
    A(f'v_mul_u32_u24 {v(x)}, 384, {v(x)}')
    A(f'v_and_b32 {v(y)}, 3, v0')
    A(f'v_lshl_add_u32 {v(x)}, {v(y)}, 3, {v(x)}')
    for tl in range(3):
        A(f'v_add3_u32 {v(vRd[tl])}, {v(vRd[tl])}, {v(x)}, {lds0}' if lds0 <= 64 else
          f'v_add_u32 {v(vRd[tl])}, {v(vRd[tl])}, {v(x)}')
        if lds0 > 64:
            A(f'v_add_u32 {v(vRd[tl])}, {lds0}, {v(vRd[tl])}')

    def issue(p):
        A(f's_mul_i32 {s(sT[0])}, {s(e.sWave)}, {8 * 12288}')
        A(f's_mul_i32 {s(sT[1])}, {s(sH)}, 384')
        A(f's_add_u32 {s(sT[0])}, {s(sT[0])}, {s(sT[1])}')
        A(f's_add_u32 {s(sT[0])}, {s(sT[0])}, {p * 160 * 12288}')
        A(f's_mul_i32 {s(sT[1])}, {s(e.sWave)}, 3072')
        A(f's_add_u32 {s(sT[1])}, {s(sT[1])}, {lds0 + (p & 1) * 61440}')
        for b in range(5):
            for i in range(3):
                A(f's_add_u32 m0, {s(sT[1])}, {b * 12288 + i * 1024}')
                A('s_nop 0')
                A(f'buffer_load_dwordx4 {v(vS[i])}, {s(sW,4)}, {s(sT[0])} offen lds')
            if b < 4:
                A(f's_add_u32 {s(sT[0])}, {s(sT[0])}, {32 * 12288}')
    issue(0)
    issue(1)
    for p in range(4):
        A(f's_waitcnt vmcnt({15 if p < 3 else 0})')
        A('s_barrier')
        if p == 0 and last:
            last()
        for t in range(5):
            for tl in range(3):
                for hf in range(2):
                    off = t * 12288 + hf * 1536
                    A(f'ds_read_b64_tr_b16 {wreg(tl, 5*p + t, hf)}, {v(vRd[tl])} offset:{off}')
            A('s_waitcnt lgkmcnt(6)')
        for tl in range(3):
            A(f'v_{"add" if p % 2 == 0 else "subrev"}_u32 {v(vRd[tl])}, 61440, {v(vRd[tl])}')
        A('s_waitcnt lgkmcnt(0)')
        A('s_barrier')
        if p + 2 < 4:
            issue(p + 2)


def x_consts(A, e, vSrc, vRd, x, y, sT):
    A(f's_and_b32 {s(sT)}, {s(e.sWave)}, 1')
    A(f's_lshl_b32 {s(sT)}, {s(sT)}, 3')
    for i in range(10):
        A(f'v_and_b32 {v(x)}, 63, v0')
        A(f'v_add_u32 {v(x)}, {64*i}, {v(x)}')
        A(f'v_mul_u32_u24 {v(y)}, 820, {v(x)}')
        A(f'v_lshrrev_b32 {v(y)}, 16, {v(y)}')
        A(f'v_mul_u32_u24 {v(vSrc+i)}, 80, {v(y)}')
        A(f'v_sub_u32 {v(x)}, {v(x)}, {v(vSrc+i)}')
        A(f'v_mul_u32_u24 {v(vSrc+i)}, 1280, {v(y)}')
        A(f'v_or_b32 {v(y)}, {s(sT)}, {v(y)}')
        A(f'v_xor_b32 {v(x)}, {v(x)}, {v(y)}')
        A(f'v_lshl_add_u32 {v(vSrc+i)}, {v(x)}, 4, {v(vSrc+i)}')
    A(f'v_and_b32 {v(y)}, 15, v0')
    for q in range(4):
        A(f'v_bfe_u32 {v(x)}, v0, 4, 2')
        A(f'v_add_u32 {v(x)}, {4*q}, {v(x)}')
        A(f'v_xor_b32 {v(x)}, {v(x)}, {v(y)}')
        A(f'v_lshlrev_b32 {v(x)}, 4, {v(x)}')
        A(f'v_mul_u32_u24 {v(vRd+q)}, 1280, {v(y)}')
        A(f'v_add_u32 {v(vRd+q)}, {v(vRd+q)}, {v(x)}')


def x_dma(vSrc, sX, sSrc, sDst):
    out = []
    for i in range(10):
        out.append([f's_add_u32 m0, {s(sDst)}, {1024 * i}', 's_nop 0',
                    f'buffer_load_dwordx4 {v(vSrc+i)}, {s(sX,4)}, {s(sSrc)} offen lds'])
    return out


def x_read(dst, vRd, t, xt, buf):
    return f'ds_read_b128 {v(dst,4)}, {v(vRd + (t & 3))} offset:{buf + xt * 20480 + (t >> 2) * 256}'
```

```python
from common import *
import common

LDS_M = 0
LDS_T = 10240
LDS_O = LDS_T + 3072
LDS_S = LDS_O + 3072
LDS_MISC = LDS_S + 4096
LDS_STG = LDS_MISC + 1024
LDS_DUMP = 24576
LDS_KV = 32768


def gen_chain(A, e, sSlow, fail='L_fail', done='L_exit', dM=1000, dC=400, dS=120, dV=160, gap=60, gapS=80, fP=3, n1=2, n2=2,
              log=False, cnt=False, cyc=False, tl=False, both=True, kvfix=False):
    warm, solo, pub = True, False, True
    sWS, sDBG, sWave, sPar, sCnt = e.sWS, e.sDBG, e.sWave, e.sPar, e.sCnt
    SA = Alloc(max(e.sFree, sSlow + 1), 102)
    sW = SA(4, 4)
    sPtr = SA(22 if cyc else 12, 4)
    sAcc = SA(4, 4)
    sRank = SA(); sH = SA(); sJ = SA(); sXl = SA()
    sStep = SA(); sS = SA(); sVM = SA(); sC = SA(); sKX = SA(); sVX = SA(); sMn = SA()
    sSp = SA(); sVMp = SA(); sMp = SA(); sLog = SA()
    sSg = SA(); sHS = SA(); sKVb = SA(); sKb = SA(); sRt = SA(); sVMc = SA(); sMa = SA(); sMb = SA(); sMx = SA(); sL5 = SA()
    sKM = SA(); sVMo = SA(); sL0 = SA(); sL1 = SA(); sL2 = SA(); sW1 = SA(); sRdy = SA(); sFlKV = SA(); sFlCh = SA()
    sT0 = SA(); sT1 = SA(); sT2 = SA(); sT3 = SA(); sScale = SA(); sRed = SA()
    sExN8 = SA(2, 2)
    sTm = SA(2, 2); sTm2 = SA(2, 2)
    sTr = sW
    assert SA.p <= 90 or cyc, SA.p

    VA = Alloc(1, 176)
    vLA = VA(); vTW = VA(); vTR = VA()
    vSst = VA(); vSpo = VA(); vL4 = VA(); vCan = VA(); vVMst = VA(); vVMld = VA(); vKVrd = VA(); vKrd = VA()
    vOW = VA(); vCst = VA(); vCld = VA(); vCld2 = VA(); vMpo = VA(); vKMst = VA(); vMst = VA(); vIdx = VA(); vDum = VA()
    vt = [VA() for _ in range(6)]
    vSel = VA(8); vOnes = VA(4); vE = VA(4)
    vAf = VA(40)
    vQ = VA(4); vK = VA(4); vV = VA(4)
    vKX = VA(8); vVX = VA(12)
    vTp = VA(2); vVp = VA(2)
    vTr = VA(8)
    vP = VA(24)
    vD = VA(8); vOR = VA(); vFlA = VA()
    vVm = VA(8); vPm = VA(4)
    vO = vAf + 8; vPx = vAf + 20
    vOf = vP
    vL = vKX; vN = vKX + 1; vG = vKX + 2
    vR = vAf
    WO_V = 176
    DUM = f'v_mov_b32 {v(vDum)}, 0'

    def wreg(kind, t):
        return a(80 * kind + 8 * t, 8)

    def woreg(u, t):
        i = (u * 6 + t) * 8
        return a(240 + i, 8) if i < 16 else v(WO_V + i - 16, 8)

    def woreg_half(u, t, q):
        i = (u * 6 + t) * 8 + 2 * q
        return a(240 + i, 2) if i < 16 else v(WO_V + i - 16, 2)

    def fill(n):
        for _ in range(n):
            A(DUM)

    def delay(cyc_):
        common.delay(A, cyc_)

    def sleep(cyc_):
        common.sleep(A, cyc_)

    t0, t1, t2, t3, t4, t5 = vt
    A(f's_load_dwordx2 {s(sPtr,2)}, s[0:1], 8')
    A(f's_load_dwordx8 {s(sPtr+4,8)}, s[0:1], 16')
    A(f'v_and_b32 {v(vL)}, 63, v0')
    A(f'v_and_b32 {v(vN)}, 15, v0')
    A(f'v_bfe_u32 {v(vG)}, v0, 4, 2')
    A(f's_mul_i32 {s(sXl)}, {s(e.sRole)}, 2731')
    A(f's_lshr_b32 {s(sXl)}, {s(sXl)}, 16')
    A(f's_mul_i32 {s(sT0)}, {s(sXl)}, 24')
    A(f's_sub_u32 {s(sRank)}, {s(e.sRole)}, {s(sT0)}')
    A(f's_mul_i32 {s(sH)}, {s(e.sRole)}, 0x5556')
    A(f's_lshr_b32 {s(sH)}, {s(sH)}, 16')
    A(f's_mul_i32 {s(sT1)}, {s(sH)}, 3')
    A(f's_sub_u32 {s(sJ)}, {s(e.sRole)}, {s(sT1)}')
    A(f's_lshl_b32 {s(sRed)}, {s(sRank)}, 1')
    A(f's_and_b32 {s(sT0)}, {s(sWave)}, 1')
    A(f's_add_u32 {s(sRed)}, {s(sRed)}, {s(sT0)}')
    A(f's_lshl_b32 {s(sFlKV)}, {s(sH)}, 7')
    A(f's_lshl_b32 {s(sT0)}, {s(sJ)}, 2')
    A(f's_add_u32 {s(sFlCh)}, {s(sFlKV)}, {s(sT0)}')
    A(f's_add_u32 {s(sFlCh)}, {s(sFlCh)}, {FL_CH}')
    A(f's_add_u32 {s(sFlKV)}, {s(sFlKV)}, {FL_KV}')
    A('s_waitcnt lgkmcnt(0)')
    A(f'v_lshlrev_b32 {v(vLA)}, 4, {v(vL)}')
    A(f's_lshl_b32 {s(sL0)}, {s(sWave)}, 10')
    A(f's_add_u32 {s(sL1)}, {s(sL0)}, 4096')
    A(f's_and_b32 {s(sW1)}, {s(sWave)}, 1')
    A(f's_lshl_b32 {s(sW1)}, {s(sW1)}, 10')
    A(f's_add_u32 {s(sL2)}, {s(sW1)}, 8192')
    A(f'v_mov_b32 {v(t0)}, 0x44444444')
    A(f'v_mov_b32 {v(t1)}, 0xeeeeeeee')
    A(f'v_cmp_gt_u32 vcc, 8, {v(vN)}')
    A(f's_mov_b64 {s(sExN8,2)}, vcc')
    A(f'v_cndmask_b32 {v(vIdx)}, {v(t1)}, {v(t0)}, vcc')
    A(f's_lshl_b32 {s(sT0)}, {s(sWave)}, 4')
    A(f'v_add_u32 {v(t0)}, {s(sT0)}, {v(vN)}')
    A(f'v_lshlrev_b32 {v(t1)}, 5, {v(t0)}')
    A(f'v_and_b32 {v(t2)}, 1, {v(vG)}')
    A(f'v_lshl_add_u32 {v(t1)}, {v(t2)}, 3, {v(t1)}')
    A(f'v_lshrrev_b32 {v(t2)}, 1, {v(vG)}')
    A(f'v_lshl_add_u32 {v(t1)}, {v(t2)}, 2, {v(t1)}')
    A(f'v_add_u32 {v(vTW)}, {LDS_T}, {v(t1)}')
    A(f'v_lshrrev_b32 {v(t2)}, 2, {v(vN)}')
    A(f'v_and_b32 {v(t3)}, 3, {v(vN)}')
    A(f'v_lshlrev_b32 {v(t0)}, 7, {v(vG)}')
    A(f'v_lshl_add_u32 {v(t0)}, {v(t2)}, 5, {v(t0)}')
    A(f'v_lshl_add_u32 {v(t0)}, {v(t3)}, 3, {v(t0)}')
    A(f'v_add_u32 {v(vTR)}, {LDS_T}, {v(t0)}')
    A(f's_mul_i32 {s(sT0)}, {s(sH)}, 3840')
    A(f's_mul_i32 {s(sT1)}, {s(sJ)}, 1280')
    A(f's_add_u32 {s(sT1)}, {s(sT1)}, {s(sT0)}')
    A(f'v_mov_b32 {v(t4)}, {OOB}')
    A(f'v_add_u32 {v(t0)}, {s(sT1)}, {v(vLA)}')
    A(f'v_add_u32 {v(t1)}, 128, {v(t0)}')
    A(f'v_cndmask_b32 {v(t0)}, {v(t4)}, {v(t0)}, {s(sExN8,2)}')
    A(f'v_cndmask_b32 {v(t1)}, {v(t4)}, {v(t1)}, {s(sExN8,2)}')
    A(f'v_lshlrev_b32 {v(t5)}, 5, {v(vN)}')
    A(f'v_lshl_add_u32 {v(t5)}, {v(vG)}, 4, {v(t5)}')
    A(f's_add_u32 {s(sT2)}, {s(sT1)}, {1024 - 256}')
    A(f'v_add_u32 {v(t5)}, {s(sT2)}, {v(t5)}')
    A(f'v_cmp_gt_u32 vcc, 2, {v(vG)}')
    A(f'v_cndmask_b32 {v(t5)}, {v(t4)}, {v(t5)}, vcc')
    A(f'v_cndmask_b32 {v(t5)}, {v(t5)}, {v(t4)}, {s(sExN8,2)}')
    for wv, r in ((1, t0), (2, t1)):
        A(f's_cmp_eq_u32 {s(sWave)}, {wv}')
        A(f's_cselect_b64 vcc, -1, 0')
        A(f'v_cndmask_b32 {v(t5)}, {v(t5)}, {v(r)}, vcc')
    A(f'v_mov_b32 {v(vSst)}, {v(t5)}')
    A(f's_mov_b32 {s(sHS)}, {s(sT0)}')
    A(f'v_lshlrev_b32 {v(vL4)}, 2, {v(vL)}')
    A(f'v_add_u32 {v(vSpo)}, {s(sT1)}, {v(vLA)}')
    A(f'v_and_b32 {v(t0)}, 1, {v(vG)}')
    A(f'v_lshrrev_b32 {v(t1)}, 1, {v(vG)}')
    A(f'v_lshrrev_b32 {v(t3)}, 3, {v(vN)}')
    A(f's_mul_i32 {s(sT0)}, {s(sH)}, 12')
    A(f's_lshl_b32 {s(sT1)}, {s(sJ)}, 2')
    A(f's_add_u32 {s(sVMc)}, {s(sT1)}, {s(sT0)}')
    A(f's_lshl_b32 {s(sVMc)}, {s(sVMc)}, 8')
    A(f's_add_u32 {s(sT1)}, {s(sT1)}, {s(sWave)}')
    A(f's_add_u32 {s(sT2)}, {s(sT0)}, {s(sT1)}')
    A(f's_lshl_b32 {s(sT2)}, {s(sT2)}, 8')
    A(f'v_lshl_add_u32 {v(t5)}, {v(t0)}, 1, {v(t1)}')
    A(f'v_lshlrev_b32 {v(t2)}, 6, {v(t5)}')
    A(f'v_lshl_add_u32 {v(t2)}, {v(vN)}, 2, {v(t2)}')
    A(f'v_add_u32 {v(vVMst)}, {s(sT2)}, {v(t2)}')
    A(f'v_mul_u32_u24 {v(t5)}, 12, {v(t5)}')
    A(f'v_add_u32 {v(t5)}, {s(sT1)}, {v(t5)}')
    A(f'v_cmp_gt_u32 vcc, 40, {v(t5)}')
    A(f'v_lshlrev_b32 {v(t5)}, 14, {v(t5)}')
    A(f'v_lshl_add_u32 {v(t5)}, {v(t3)}, 12, {v(t5)}')
    A(f'v_and_b32 {v(t2)}, 7, {v(vN)}')
    A(f'v_lshl_add_u32 {v(t5)}, {v(t2)}, 4, {v(t5)}')
    A(f's_lshl_b32 {s(sT2)}, {s(sH)}, 7')
    A(f'v_add_u32 {v(t5)}, {s(sT2)}, {v(t5)}')
    A(f'v_cndmask_b32 {v(vCst)}, {v(t4)}, {v(t5)}, vcc')
    A(f's_mul_i32 {s(sT2)}, {s(sWave)}, 3')
    A(f's_add_u32 {s(sT3)}, {s(sT2)}, {s(sT0)}')
    A(f's_lshl_b32 {s(sT3)}, {s(sT3)}, 8')
    A(f'v_lshlrev_b32 {v(t5)}, 2, {v(vL)}')
    A(f'v_add_u32 {v(vVMld)}, {s(sT3)}, {v(t5)}')
    A(f's_lshl_b32 {s(sT2)}, {s(sT2)}, 10')
    A(f's_add_u32 {s(sT2)}, {s(sT2)}, {LDS_KV + 4096}')
    A(f'v_add_u32 {v(vKVrd)}, {s(sT2)}, {v(vLA)}')
    A(f's_add_u32 {s(sT2)}, {s(sWave)}, 1')
    A(f's_and_b32 {s(sT2)}, {s(sT2)}, 1')
    A(f's_lshl_b32 {s(sT2)}, {s(sT2)}, 3')
    A(f's_add_u32 {s(sT2)}, {s(sT2)}, {LDS_KV}')
    A(f'v_add_u32 {v(vKrd)}, {s(sT2)}, {v(vLA)}')
    A(f's_mul_i32 {s(sKX)}, {s(sH)}, 12288')
    A(f's_lshl_b32 {s(sT3)}, {s(sJ)}, 12')
    A(f's_add_u32 {s(sKX)}, {s(sKX)}, {s(sT3)}')
    A(f's_add_u32 {s(sKX)}, {s(sKX)}, {s(sL0)}')
    A(f's_add_u32 {s(sKX)}, {s(sKX)}, {KX_OFF}')
    A(f's_add_u32 {s(sKb)}, {s(sL0)}, {LDS_KV}')
    A(f's_mul_i32 {s(sT3)}, {s(sL0)}, 3')
    A(f's_lshl_b32 {s(sVX)}, {s(sT0)}, 10')
    A(f's_add_u32 {s(sVX)}, {s(sVX)}, {s(sT3)}')
    A(f's_add_u32 {s(sVX)}, {s(sVX)}, {VX_OFF}')
    A(f's_add_u32 {s(sKVb)}, {s(sT3)}, {LDS_KV + 4096}')
    A(f's_mul_i32 {s(sT2)}, {s(sWave)}, 768')
    A(f's_add_u32 {s(sT2)}, {s(sT2)}, {LDS_O}')
    A(f'v_lshlrev_b32 {v(t5)}, 7, {v(t1)}')
    A(f'v_lshl_add_u32 {v(t5)}, {v(vN)}, 4, {v(t5)}')
    A(f'v_lshl_add_u32 {v(t5)}, {v(t0)}, 3, {v(t5)}')
    A(f'v_add_u32 {v(t5)}, {s(sT2)}, {v(t5)}')
    A(f'v_lshlrev_b32 {v(t2)}, 3, {v(vL)}')
    A(f'v_add_u32 {v(t2)}, {LDS_DUMP}, {v(t2)}')
    A(f'v_cndmask_b32 {v(vOW)}, {v(t2)}, {v(t5)}, {s(sExN8,2)}')
    A(f'v_and_b32 {v(t2)}, 7, {v(vN)}')
    A(f'v_lshlrev_b32 {v(t5)}, 7, {v(vG)}')
    A(f'v_lshl_add_u32 {v(t5)}, {v(t2)}, 4, {v(t5)}')
    A(f'v_add_u32 {v(vOR)}, {LDS_O}, {v(t5)}')
    A(f's_lshl_b32 {s(sT2)}, {s(sRed)}, 14')
    A(f'v_add_u32 {v(vCld)}, {s(sT2)}, {v(vLA)}')
    A(f'v_add_u32 {v(vCld2)}, 4096, {v(vCld)}')
    A(f's_lshl_b32 {s(sT2)}, {s(sRed)}, 8')
    A(f'v_lshlrev_b32 {v(t5)}, 4, {v(vN)}')
    A(f'v_lshl_add_u32 {v(t5)}, {v(t0)}, 3, {v(t5)}')
    A(f'v_lshl_add_u32 {v(t5)}, {v(t1)}, 2, {v(t5)}')
    A(f'v_add_u32 {v(vMst)}, {s(sT2)}, {v(t5)}')
    A(f's_lshl_b32 {s(sT2)}, {s(sRank)}, 9')
    A(f'v_add_u32 {v(t5)}, {s(sT2)}, {v(vLA)}')
    A(f'v_cmp_gt_u32 vcc, 32, {v(vL)}')
    A(f'v_cndmask_b32 {v(t5)}, {v(t4)}, {v(t5)}, vcc')
    A(f's_cmp_ge_u32 {s(sRank)}, 20')
    A(f's_cselect_b64 vcc, -1, 0')
    A(f'v_cndmask_b32 {v(vMpo)}, {v(t5)}, {v(t4)}, vcc')
    A(f's_mul_i32 {s(sL5)}, {s(sWave)}, 5120')
    A(f'v_min_u32 {v(t5)}, 39, {v(vL)}')
    A(f'v_lshlrev_b32 {v(t5)}, 7, {v(t5)}')
    A(f'v_and_b32 {v(t2)}, 3, {v(vL)}')
    A(f'v_lshl_add_u32 {v(t5)}, {v(t2)}, 4, {v(t5)}')
    A(f'v_add_u32 {v(vCan)}, {s(sL5)}, {v(t5)}')
    A(f's_mul_i32 {s(sT2)}, {s(sH)}, 3072')
    A(f's_lshl_b32 {s(sT3)}, {s(sJ)}, 10')
    A(f's_add_u32 {s(sT2)}, {s(sT2)}, {s(sT3)}')
    A(f'v_and_b32 {v(t2)}, 7, {v(vN)}')
    A(f'v_lshlrev_b32 {v(t5)}, 7, {v(vG)}')
    A(f'v_lshl_add_u32 {v(t5)}, {v(t2)}, 4, {v(t5)}')
    A(f'v_add_u32 {v(t5)}, {s(sT2)}, {v(t5)}')
    A(f'v_cndmask_b32 {v(vKMst)}, {v(t5)}, {v(t4)}, {s(sExN8,2)}')
    A(f's_mov_b32 {s(sKM)}, {KM_OFF}')
    A(f's_mov_b32 {s(sVMo)}, {VMO_OFF}')
    A(f'v_cmp_eq_u32 vcc, 0, {v(vL)}')
    A(f'v_cndmask_b32 {v(vFlA)}, {v(t4)}, {v(vL)}, vcc')
    A(f'v_and_b32 {v(t5)}, 1, {v(vN)}')
    A(f'v_lshlrev_b32 {v(t5)}, 4, {v(t5)}')
    A(f'v_mov_b32 {v(t2)}, 0x3f80')
    A(f'v_lshlrev_b32 {v(t5)}, {v(t5)}, {v(t2)}')
    A(f'v_lshrrev_b32 {v(t2)}, 1, {v(vN)}')
    for i in range(8):
        A(f'v_cmp_eq_u32 vcc, {i}, {v(t2)}')
        A(f'v_cndmask_b32 {v(vSel+i)}, 0, {v(t5)}, vcc')
    for i in range(4):
        A(f'v_mov_b32 {v(vOnes+i)}, -1')
        A(f'v_mov_b32 {v(vE+i)}, 0x3f803f80')
    A(f's_mov_b32 {s(sScale)}, {f32bits(SCALE_LOG2E):#x}')
    for r in list(range(vVm, vVm + 8)) + list(range(vPm, vPm + 4)) + list(range(vQ, vQ + 12)) + list(range(vD, vD + 8)):
        A(f'v_mov_b32 {v(r)}, 0')

    A(f's_mul_i32 {s(sMx)}, {s(sXl)}, 10240')
    A(f's_add_u32 {s(sMx)}, {s(sMx)}, {M_OFF}')
    for k_ in range(4):
        A(f's_mov_b32 {s(sT0)}, {S_OFF + (k_ << S_SH)}')
        A(f's_mov_b32 {s(sT1)}, {VM_OFF + (k_ << VM_SH)}')
        A(f's_add_u32 {s(sT2)}, {s(sMx)}, {k_ << M_SH}')
        A(f'buffer_store_dwordx4 {v(vOnes,4)}, {v(vSst)}, {s(sWS,4)}, {s(sT0)} offen sc1')
        A(f'buffer_store_dword {v(vOnes)}, {v(vVMst)}, {s(sWS,4)}, {s(sT1)} offen sc1')
        A(f'buffer_store_dwordx4 {v(vOnes,4)}, {v(vMpo)}, {s(sWS,4)}, {s(sT2)} offen sc1')
    vSrcW = vAf; vSrcO = vAf + 1; vRd = vAf + 2; vRdB = vAf + 3; vRdO = vAf + 4
    A(f's_and_b32 {s(sT0)}, {s(sWave)}, 1')
    A(f's_lshl_b32 {s(sT0)}, {s(sT0)}, 1')
    A(f'v_lshrrev_b32 {v(t2)}, 5, {v(vL)}')
    A(f'v_add_u32 {v(t2)}, {s(sT0)}, {v(t2)}')
    A(f'v_lshlrev_b32 {v(t2)}, 1, {v(t2)}')
    A(f'v_and_b32 {v(t3)}, 7, {v(vL)}')
    A(f'v_xor_b32 {v(t3)}, {v(t3)}, {v(t2)}')
    A(f'v_lshlrev_b32 {v(t3)}, 4, {v(t3)}')
    A(f'v_lshrrev_b32 {v(t2)}, 3, {v(vL)}')
    A(f's_mul_i32 {s(sT0)}, {s(sH)}, 384')
    A(f's_lshl_b32 {s(sT1)}, {s(sJ)}, 7')
    A(f's_add_u32 {s(sT0)}, {s(sT0)}, {s(sT1)}')
    A(f'v_mul_u32_u24 {v(t5)}, 12288, {v(t2)}')
    A(f'v_add3_u32 {v(vSrcW)}, {v(t5)}, {v(t3)}, {s(sT0)}')
    A(f's_mul_i32 {s(sT0)}, {s(sH)}, 245760')
    A(f's_add_u32 {s(sT0)}, {s(sT0)}, {s(sT1)}')
    A(f'v_mul_u32_u24 {v(t5)}, 1280, {v(t2)}')
    A(f'v_add3_u32 {v(vSrcO)}, {v(t5)}, {v(t3)}, {s(sT0)}')
    A(f'v_lshrrev_b32 {v(t2)}, 3, {v(vN)}')
    A(f'v_bfe_u32 {v(t3)}, {v(vN)}, 2, 1')
    A(f'v_lshlrev_b32 {v(t5)}, 4, {v(t1)}')
    A(f'v_lshl_add_u32 {v(t5)}, {v(t2)}, 3, {v(t5)}')
    A(f'v_lshl_add_u32 {v(t5)}, {v(t0)}, 2, {v(t5)}')
    A(f'v_add_u32 {v(t5)}, {v(t5)}, {v(t3)}')
    A(f'v_lshlrev_b32 {v(t5)}, 7, {v(t5)}')
    A(f'v_lshl_add_u32 {v(t2)}, {v(t2)}, 1, {v(t0)}')
    A(f'v_xor_b32 {v(t2)}, {s(sWave)}, {v(t2)}')
    A(f'v_lshl_add_u32 {v(t5)}, {v(t2)}, 5, {v(t5)}')
    A(f'v_and_b32 {v(t3)}, 3, {v(vN)}')
    A(f'v_lshl_add_u32 {v(vRd)}, {v(t3)}, 3, {v(t5)}')

    A(f'v_lshlrev_b32 {v(t5)}, 3, {v(t1)}')
    A(f'v_lshl_add_u32 {v(t5)}, {v(t0)}, 2, {v(t5)}')
    A(f'v_bfe_u32 {v(t2)}, {v(vN)}, 2, 1')
    A(f'v_add_u32 {v(t5)}, {v(t5)}, {v(t2)}')
    A(f'v_lshlrev_b32 {v(t5)}, 7, {v(t5)}')
    A(f'v_xor_b32 {v(t2)}, {s(sWave)}, {v(vG)}')
    A(f'v_lshl_add_u32 {v(t5)}, {v(t2)}, 5, {v(t5)}')
    A(f'v_lshl_add_u32 {v(t5)}, {v(t3)}, 3, {v(t5)}')
    A(f'v_lshrrev_b32 {v(t2)}, 3, {v(vN)}')
    A(f'v_mul_u32_u24 {v(t2)}, 12288, {v(t2)}')
    A(f'v_add_u32 {v(vRdO)}, {v(t5)}, {v(t2)}')

    phases = [('w', k, hf) for k in range(3) for hf in range(2)] + [('o', p_, hf) for p_ in range(2) for hf in range(2)]

    def issue(p):
        kind, x, hf = phases[p]
        buf = LDS_STG + (p % 3) * 40960
        if kind == 'w':
            if hf == 0:
                srd(A, sW, sPtr + 4 + 2 * x, 7864320)
            n, rowb, base, src = 10, 12288, hf * 320 * 12288, vSrcW
        else:
            if x == 0 and hf == 0:
                srd(A, sW, sPtr + 10, 7864320)
            n, rowb, base, src = 6, 1280, 2 * x * 384 + hf * 96 * 1280, vSrcO
        A(f's_mul_i32 {s(sT0)}, {s(sWave)}, {8 * rowb}')
        A(f's_add_u32 {s(sT0)}, {s(sT0)}, {base}')
        A(f's_add_u32 {s(sT1)}, {s(sL0)}, {buf}')
        for i in range(n):
            A(f's_mov_b32 m0, {s(sT1)}')
            A(f'buffer_load_dwordx4 {v(src)}, {s(sW,4)}, {s(sT0)} offen lds')
            if i + 1 < n:
                if kind == 'o' and i == 2:
                    A(f's_sub_u32 {s(sT0)}, {s(sT0)}, {64 * rowb - 384}')
                else:
                    A(f's_add_u32 {s(sT0)}, {s(sT0)}, {32 * rowb}')
                A(f's_add_u32 {s(sT1)}, {s(sT1)}, 4096')
        return n

    cn = [issue(0), issue(1), issue(2)]
    for p in range(len(phases)):
        kind, x, hf = phases[p]
        A(f's_waitcnt vmcnt({sum(cn[p + 1:])})')
        A('s_barrier')
        if p == 0:
            A(f's_cmp_lg_u32 {s(sWave)}, 0')
            A('s_cbranch_scc1 L_ch_arr')
            A(f'v_mov_b32 {v(t2)}, 1')
            A(f'v_mov_b32 {v(t5)}, {DBG_ARR}')
            A('s_mov_b64 exec, 1')
            A(f'buffer_atomic_add {v(t2)}, {v(t5)}, {s(sDBG,4)}, 0 offen sc1')
            A('s_mov_b64 exec, -1')
            A.label('L_ch_arr')
        buf = LDS_STG + (p % 3) * 40960
        A(f'v_add_u32 {v(vRdB)}, {buf}, {v(vRd if kind == "w" else vRdO)}')
        for t in range(5 if kind == 'w' else 3):
            for q in range(4):
                if kind == 'w':
                    off = t * 8192 + (q >> 1) * 4096 + (q & 1) * 256
                    dst = a(80 * x + 8 * (5 * hf + t) + 2 * q, 2)
                else:
                    off = t * 4096 + (q >> 1) * 2048 + (q & 1) * 256
                    dst = woreg_half(x, 3 * hf + t, q)
                A(f'ds_read_b64_tr_b16 {dst}, {v(vRdB)} offset:{off}')
        A('s_waitcnt lgkmcnt(0)')
        if p + 3 < len(phases):
            A('s_barrier')
            cn.append(issue(p + 3))

    def timeout(loop, acc=None):
        if acc is not None and cnt:
            A(f's_add_u32 {s(sAcc+acc)}, {s(sAcc+acc)}, 1')
        A(f's_add_u32 {s(sCnt)}, {s(sCnt)}, 1')
        A(f's_cmp_lt_u32 {s(sCnt)}, 0x40000')
        A(f's_cbranch_scc1 {loop}')
        A(f's_branch {fail}')

    e.mark(A, 2, t0, t1)
    srd(A, sW, sPtr, 10240)
    A(f'v_and_b32 {v(t2)}, 7, {v(vL)}')
    A(f'v_mul_u32_u24 {v(t5)}, 1280, {v(t2)}')
    A(f'v_lshl_add_u32 {v(t5)}, {v(vG)}, 5, {v(t5)}')
    A(f'v_bfe_u32 {v(t2)}, {v(vL)}, 3, 1')
    A(f'v_lshl_add_u32 {v(t5)}, {v(t2)}, 4, {v(t5)}')
    for l in (sL0, sL1, sL2):
        A(f's_lshr_b32 {s(sT0)}, {s(l)}, 3')
        A(f's_mov_b32 m0, {s(l)}')
        A(f'buffer_load_dwordx4 {v(t5)}, {s(sW,4)}, {s(sT0)} offen lds')
    for k_ in range(4):
        A(f's_mov_b32 {s(sT0)}, {S_OFF + (k_ << S_SH)}')
        A(f's_mov_b32 {s(sT1)}, {VM_OFF + (k_ << VM_SH)}')
        A(f's_add_u32 {s(sT2)}, {s(sMx)}, {k_ << M_SH}')
        A(f'buffer_load_dword {v(vP)}, {v(vSst)}, {s(sWS,4)}, {s(sT0)} offen sc1')
        A(f'buffer_load_dword {v(vP+1)}, {v(vVMst)}, {s(sWS,4)}, {s(sT1)} offen sc1')
        A(f'buffer_load_dword {v(vP+2)}, {v(vMpo)}, {s(sWS,4)}, {s(sT2)} offen sc1')
    e.start(A, sSlow, t0, t1, fail)
    fl_place(A, e, (sFlCh, sFlKV), sT0)

    def kv_adv():
        if kvfix:
            return
        A(f's_add_u32 {s(sKX)}, {s(sKX)}, {SEG_ALL}')
        A(f's_add_u32 {s(sVX)}, {s(sVX)}, {SEG_ALL}')

    def kv_dma_list():
        def ld(so, off):
            return f'buffer_load_dwordx4 {v(vLA)}, {s(sWS,4)}, {s(so)} offen offset:{off} sc1 lds'
        return [[f's_mov_b32 m0, {s(sKb)}', 's_nop 0', ld(sKX, 0)],
                [f's_mov_b32 m0, {s(sKVb)}', 's_nop 0', ld(sVX, 0)], [ld(sVX, 1024)], [ld(sVX, 2048)]]

    def kv_wait(name, need):
        A(f's_cmp_ge_u32 {s(sRdy)}, {need}')
        A(f's_cbranch_scc1 {name}_e')
        A('s_mov_b64 exec, 0xff')
        wait_word(A, name, t0, vL4, sWS, s(sFlKV), 'gt', need, sCnt, fail)
        A(f'v_readlane_b32 {s(sRdy)}, {v(t0)}, 0')
        for i_ in range(1, 8):
            A(f'v_readlane_b32 {s(sT0)}, {v(t0)}, {i_}')
            A(f's_min_u32 {s(sRdy)}, {s(sRdy)}, {s(sT0)}')
        A('s_mov_b64 exec, -1')
        A.label(name + '_e')

    A(f's_mov_b32 {s(sRdy)}, 0')
    kv_wait('L_ch_kv0', 1)
    e.mark(A, 3, t0, t1)
    A('s_barrier')
    for g_ in kv_dma_list():
        for x in g_:
            A(x)
    kv_adv()
    A(f's_mov_b32 {s(sStep)}, 0')
    A(f's_mov_b32 {s(sRt)}, 1')
    A(f'v_mov_b32 {v(t0)}, 0')
    A(f'ds_write_b32 {v(vL4)}, {v(t0)} offset:{LDS_MISC}')
    A(f's_mov_b32 {s(sLog)}, {MLOG_OFF + 10240}')

    def slots():
        A(f's_and_b32 {s(sT0)}, {s(sStep)}, 3')
        A(f's_xor_b32 {s(sT1)}, {s(sT0)}, 2')
        A(f's_add_u32 {s(sT2)}, {s(sStep)}, 1')
        A(f's_and_b32 {s(sT2)}, {s(sT2)}, 3')
        for dst, src, sh, base in ((sS, sT0, S_SH, S_OFF), (sSp, sT1, S_SH, S_OFF), (sVM, sT0, VM_SH, VM_OFF), (sVMp, sT1, VM_SH, VM_OFF),
                                   (sMp, sT1, M_SH, s(sMx)), (sMn, sT2, M_SH, s(sMx))):
            A(f's_lshl_b32 {s(dst)}, {s(src)}, {sh}')
            A(f's_add_u32 {s(dst)}, {s(dst)}, {base}')
        A(f's_add_u32 {s(sSg)}, {s(sS)}, {s(sHS)}')
        c_base(A, sC, sStep, sPar, sT1, sT2)

    def next_src():
        A(f's_add_u32 {s(sMa)}, {s(sMn)}, {s(sL5)}')
        A(f's_add_u32 {s(sMb)}, {s(sMa)}, 4096')
    slots()
    for i in range(4):
        A(f's_mov_b32 {s(sAcc+i)}, 0')
    if cyc:
        for i in range(24):
            A(f's_mov_b32 {s(sTr+i)}, 0')
    A('s_waitcnt vmcnt(0) lgkmcnt(0)')
    e.mark(A, 4, t0, t1)
    if tl or cyc or cnt:
        A(f's_memrealtime {s(sTm2,2)}')
        A('s_waitcnt lgkmcnt(0)')
    if both:
        A(f's_cmp_lg_u32 {s(sSlow)}, 0')
        A('s_cbranch_scc1 S_b1')
    A('s_branch F_b1')

    def stamp(i, nxt=False):
        if tl and not nxt and i in (0, 3, 5, 7):
            A(f's_memrealtime {s(sPtr + 2 * (0, 3, 5, 7).index(i), 2)}')
        if cyc and not nxt and i in cyc:
            A(f's_memtime {s(sTr+2*cyc.index(i),2)}')

    def tldump():
        if not tl:
            return
        A(f's_lshl_b32 {s(sT0)}, {s(e.sRole)}, 2')
        A(f's_add_u32 {s(sT0)}, {s(sT0)}, {s(sWave)}')
        A(f's_mul_i32 {s(sT1)}, {s(sStep)}, 384')
        A(f's_add_u32 {s(sT0)}, {s(sT0)}, {s(sT1)}')
        A(f's_lshl_b32 {s(sT0)}, {s(sT0)}, 5')
        A(f's_add_u32 {s(sT0)}, {s(sT0)}, {TL_OFF}')
        A('s_waitcnt lgkmcnt(0)')
        for k_ in range(4):
            A(f'v_mov_b32 {v(vP+k_)}, {s(sPtr+2*k_)}')
            A(f'v_mov_b32 {v(vP+4+k_)}, {s(sAcc+k_)}')
        A(f'v_mov_b32 {v(t0)}, 0')
        A('s_mov_b64 exec, 1')
        A(f'buffer_store_dwordx4 {v(vP,4)}, {v(t0)}, {s(sWS,4)}, {s(sT0)} offen')
        A(f'buffer_store_dwordx4 {v(vP+4,4)}, {v(t0)}, {s(sWS,4)}, {s(sT0)} offen offset:16')
        A('s_mov_b64 exec, -1')

    def maxchain(regs, c0, c1):
        regs = list(regs)
        out = [f'v_max3_u32 {v(c0)}, {v(regs[0])}, {v(regs[1])}, {v(regs[2])}']
        rest = regs[3:]
        two = len(rest) >= 3
        if two:
            out.append(f'v_max3_u32 {v(c1)}, {v(rest[0])}, {v(rest[1])}, {v(rest[2])}')
            rest = rest[3:]
        k = 0
        while len(rest) >= 2:
            c = (c0, c1)[k & 1]
            out.append(f'v_max3_u32 {v(c)}, {v(c)}, {v(rest[0])}, {v(rest[1])}')
            rest = rest[2:]
            k += 1
        if rest:
            out.append(f'v_max3_u32 {v(c0)}, {v(c0)}, {v(c1)}, {v(rest[0])}')
        elif two:
            out.append(f'v_max_u32 {v(c0)}, {v(c0)}, {v(c1)}')
        out.append(f'v_cmp_eq_u32 vcc, -1, {v(c0)}')
        return out

    def k_pub():
        for u in range(2):
            A(f'buffer_store_dwordx4 {v(vTr+4*u,4)}, {v(vKMst)}, {s(sWS,4)}, {s(sKM)} offen offset:{512*u} sc1')
        A(f's_add_u32 {s(sKM)}, {s(sKM)}, {32 * 3072}')

    def steps(P, st_intra):
        A('.pad ' + DUM)
        A.label(P + '_b1')
        A('s_barrier')
        stamp(0); stamp(8, True)
        def rdA(t):
            return f'ds_read_b128 {v(vAf+4*t,4)}, {v(vLA)} offset:{LDS_M + 1024*t}'

        def sm(acc, kind, t):
            return f'v_smfmac_f32_16x16x64_bf16 {v(acc,4)}, {v(vAf+4*t,4)}, {wreg(kind,t)}, {v(vIdx)}'
        for t in range(3):
            A(rdA(t))
        A(f's_cmp_lg_u32 {s(sWave)}, 0')
        A(f's_cbranch_scc1 {P}_nofl')
        A(f'v_mov_b32 {v(t0)}, {s(sStep)}')
        A(f'buffer_store_dword {v(t0)}, {v(vFlA)}, {s(sWS,4)}, {s(sFlCh)} offen sc1')
        A.label(P + '_nofl')
        kread = [f'ds_read_b64 {v(vKX+2*u,2)}, {v(vKrd)} offset:{1024*u}' for u in range(4)]
        extra = [None, None] + [f'ds_read_b128 {v(vVX+4*u,4)}, {v(vKVrd)} offset:{1024*u}' for u in range(3)]
        for t in range(7):
            A(f's_waitcnt lgkmcnt(2)')
            stamp('a%d' % t)
            A(sm(vQ, 0, t))
            A(rdA(t + 3))
            A(sm(vK, 1, t))
        tail = [(vQ, 0, 7), (vQ, 0, 8), (vQ, 0, 9), (vK, 1, 7), (vK, 1, 8), (vK, 1, 9)]
        for k_, (acc, kind, t) in enumerate(tail):
            if k_ < 3:
                A(f's_waitcnt lgkmcnt({2 - k_})')
            stamp('b%d' % k_)
            A(sm(acc, kind, t))
            if k_ in (3, 4):
                A(kread.pop(0)); A(kread.pop(0))
        A(f'v_permlane32_swap_b32 {v(vQ)}, {v(vQ+2)}')
        A(f'v_permlane32_swap_b32 {v(vQ+1)}, {v(vQ+3)}')
        A(f'v_add_f32 {v(vQ)}, {v(vQ)}, {v(vQ+2)}')
        A(f'v_add_f32 {v(vQ+1)}, {v(vQ+1)}, {v(vQ+3)}')
        A(f'v_cvt_pk_bf16_f32 {v(vTp)}, {v(vQ)}, {v(vQ+1)}')
        A(f'v_cmp_u_f32 vcc, {v(vQ)}, {v(vQ+1)}')
        stamp(1)
        A(f'v_permlane32_swap_b32 {v(vK)}, {v(vK+2)}')
        A(f'v_permlane32_swap_b32 {v(vK+1)}, {v(vK+3)}')
        A(f'v_add_f32 {v(vK)}, {v(vK)}, {v(vK+2)}')
        A(f'v_add_f32 {v(vK+1)}, {v(vK+1)}, {v(vK+3)}')
        A(f'v_cvt_pk_bf16_f32 {v(vTp+1)}, {v(vK)}, {v(vK+1)}')
        A(f'ds_write2_b32 {v(vTW)}, {v(vTp)}, {v(vTp+1)} offset0:0 offset1:4')

        A(f's_cbranch_vccnz {P}_retry' if not solo else 's_nop 0')
        A.label(P + '_mem_ok')

        def smv(t):
            A(sm(vV, 2, t))
        for t in range(4):
            smv(t)
        A(f's_cmp_eq_u32 {s(sWave)}, 3')
        A('s_waitcnt lgkmcnt(0)')
        A('s_barrier')
        stamp(9)
        A(f'ds_read_b32 {v(t4)}, {v(vL4)} offset:{LDS_MISC}')
        A(f's_cbranch_scc1 {P}_soft')
        for u in range(2):
            for hf in range(2):
                A(f'ds_read_b64_tr_b16 {v(vTr+4*u+2*hf,2)}, {v(vTR)} offset:{1024*u + 512*hf}')
        for t in range(4, 8):
            smv(t)
        A(f's_cmp_eq_u32 {s(sWave)}, 0')
        A('s_waitcnt lgkmcnt(0)')
        stamp('tr')
        A(f's_cbranch_scc1 {P}_sc0')
        A(f'v_mfma_f32_16x16x32_bf16 {v(vQ,4)}, {v(vKX,4)}, {v(vTr,4)}, 0')
        A(f'v_mfma_f32_16x16x32_bf16 {v(vQ,4)}, {v(vKX+4,4)}, {v(vTr+4,4)}, {v(vQ,4)}')
        A.label(P + '_sc1')
        A(f'v_cmp_eq_u32 vcc, {s(sRt)}, {v(t4)}')
        for i in range(4):
            A(f'v_mov_b32 {v(vK+i)}, 0')
        A(f's_cbranch_vccnz {P}_redo')
        A(f'buffer_store_dwordx4 {v(vQ,4)}, {v(vSst)}, {s(sWS,4)}, {s(sS)} offen {st_intra}')
        stamp(2)
        smv(8); smv(9)

        def vtail():
            for x in extra[2:]:
                A(x)
            for i in range(4):
                A(f'v_mov_b32 {v(vQ+i)}, 0')
            A(f'v_permlane32_swap_b32 {v(vV)}, {v(vV+2)}')
            A(f'v_permlane32_swap_b32 {v(vV+1)}, {v(vV+3)}')
            A(f'v_add_f32 {v(vV)}, {v(vV)}, {v(vV+2)}')
            A(f'v_add_f32 {v(vV+1)}, {v(vV+1)}, {v(vV+3)}')
            A(f'v_cvt_pk_bf16_f32 {v(vVp)}, {v(vV)}, {v(vV+1)}')
            A(f'buffer_store_dword {v(vVp)}, {v(vVMst)}, {s(sWS,4)}, {s(sVM)} offen {st_intra}')
            stamp(11)
            A(f's_mov_b32 {s(sCnt)}, 0')
            next_src()
            for i in range(4):
                A(f'v_mov_b32 {v(vV+i)}, 0')
            for i in range(8):
                A(f'v_mov_b32 {v(vD+i)}, 0')
            A(f's_cmp_eq_u32 {s(sStep)}, 63')
            A('s_cbranch_scc1 L_ch_last')

        def ldV():
            for c in range(3):
                A(f'buffer_load_dword {v(vVm+2*c)}, {v(vVMld)}, {s(sWS,4)}, {s(sVM)} offen offset:{256*c} sc1')
        vtail()
        A('.pad')
        delay(dV)
        A.label(P + '_pollV')
        ldV()
        A('s_waitcnt vmcnt(0)')
        A.label(P + '_chkV')
        A(f'v_max3_u32 {v(t3)}, {v(vVm)}, {v(vVm+2)}, {v(vVm+4)}')
        A(f'v_cmp_eq_u32 vcc, -1, {v(t3)}')
        A(f's_cbranch_vccnz {P}_againV' if not solo else 's_nop 0')
        A('s_waitcnt lgkmcnt(0)')
        stamp('Svm')
        A('s_barrier')
        stamp('Sbar')
        A(f'ds_read_b128 {v(vPx,4)}, {v(vLA)} offset:{LDS_S}')
        A(f'ds_read_b32 {v(vPm)}, {v(vL4)} offset:{LDS_S + 1024}')
        A('.pad ' + DUM)
        fill(fP)
        A('s_waitcnt lgkmcnt(1)')
        stamp('P')
        for u in range(3):
            A(f'v_mfma_f32_16x16x32_bf16 {v(vO+4*u,4)}, {v(vVX+4*u,4)}, {v(vPx,4)}, 0')
        A('s_waitcnt lgkmcnt(0)')
        A.label(P + '_pvm')
        vLs = vAf + 28
        for u in range(3):
            A(f'v_mfma_f32_16x16x32_bf16 {v(vO+4*u,4)}, {v(vVm+2*u,4)}, {v(vPm,4)}, {v(vO+4*u,4)}')
        stamp(4)
        for u in range(3):
            A(f'v_cvt_pk_bf16_f32 {v(vO+4*u)}, {v(vO+4*u)}, {v(vO+4*u+1)}')
            A(f'v_cvt_pk_bf16_f32 {v(vO+4*u+1)}, {v(vO+4*u+2)}, {v(vO+4*u+3)}')
            A(f'ds_write_b64 {v(vOW)}, {v(vO+4*u,2)} offset:{256*u}')
        stamp('Ow')
        A(f'v_mfma_f32_16x16x32_bf16 {v(vLs,4)}, {v(vPx,4)}, {v(vE,4)}, 0')
        A(f'v_mfma_f32_16x16x32_bf16 {v(vLs,4)}, {v(vPm,4)}, {v(vE,4)}, {v(vLs,4)}')
        A(f's_cmp_eq_u32 {s(sStep)}, 0')
        A(f's_cbranch_scc1 {P}_kv1')
        A.label(P + '_kv1e')
        slow = kv_dma_list()
        if pub:
            slow.append([f'buffer_store_dword {v(vVp)}, {v(vVMst)}, {s(sWS,4)}, {s(sVMo)} offen sc1',
                         f's_add_u32 {s(sVMo)}, {s(sVMo)}, {32 * 12 * 256}'])
        for _ in range(n1):
            for x in slow.pop(0):
                A(x)
        A('s_waitcnt lgkmcnt(0)')
        A('s_barrier')
        stamp(10)
        for t in range(3):
            A(f'ds_read_b128 {v(vOf+4*t,4)}, {v(vOR)} offset:{512*t}')

        for _ in range(min(n2, len(slow))):
            for x in slow.pop(0):
                A(x)

        def smo(u, t):
            A(f'v_smfmac_f32_16x16x64_bf16 {v(vD+4*u,4)}, {v(vOf+4*t,4)}, {woreg(u,t)}, {v(vIdx)}')
        for t in range(6):
            A(f's_waitcnt lgkmcnt({min(2, 5 - t)})')
            stamp('o%d' % t)
            smo(0, t)
            if t < 3:
                A(f'ds_read_b128 {v(vOf+4*(t+3),4)}, {v(vOR)} offset:{512*(t+3)}')
            elif slow:
                for x in slow.pop(0):
                    A(x)
        assert not slow
        fin = [f'v_rcp_f32 {v(vLs+r)}, {v(vLs+r)}' for r in range(4)]
        for t in range(6):
            smo(1, t)
            if fin:
                A(fin.pop(0))
        stamp('oend')
        for p_ in range(2):
            for r in range(4):
                A(f'v_mul_f32 {v(vD+4*p_+r)}, {v(vD+4*p_+r)}, {v(vLs+r)}')
            A(f'v_cvt_pk_bf16_f32 {v(vO+2*p_)}, {v(vD+4*p_)}, {v(vD+4*p_+1)}')
            A(f'v_cvt_pk_bf16_f32 {v(vO+2*p_+1)}, {v(vD+4*p_+2)}, {v(vD+4*p_+3)}')
        A(f'v_permlane16_swap_b32 {v(vO)}, {v(vO+2)}')
        A(f'v_permlane16_swap_b32 {v(vO+1)}, {v(vO+3)}')
        A(f'buffer_store_dwordx4 {v(vO,4)}, {v(vCst)}, {s(sWS,4)}, {s(sC)} offen sc1')
        A('.pad')
        stamp(5)
        kv_adv()
        delay(56)
        A(f's_cmp_ge_u32 {s(sWave)}, 2')
        A(f's_cbranch_scc1 {P}_reduce')
        A(f's_cmp_eq_u32 {s(sWave)}, 0')
        A(f's_cbranch_scc0 {P}_hk1')
        A(f'buffer_store_dwordx4 {v(vOnes,4)}, {v(vSpo)}, {s(sWS,4)}, {s(sSp)} offen {st_intra}')
        A('s_mov_b64 exec, 0xffff')
        A(f'buffer_store_dwordx4 {v(vOnes,4)}, {v(vSpo)}, {s(sWS,4)}, {s(sSp)} offen offset:1024 {st_intra}')
        A('s_mov_b64 exec, -1')
        A(f's_add_u32 {s(sT1)}, {s(sStep)}, 3')
        A(f's_min_u32 {s(sT1)}, {s(sT1)}, 64')
        kv_wait(P + '_kvw', s(sT1))
        A(f's_branch {P}_hk')
        A.label(P + '_hk1')
        k_pub()
        A(f's_add_u32 {s(sT0)}, {s(sVMp)}, {s(sVMc)}')
        A(f'buffer_store_dwordx4 {v(vOnes,4)}, {v(vMpo)}, {s(sWS,4)}, {s(sMp)} offen {st_intra}')
        A(f'buffer_store_dwordx4 {v(vOnes,4)}, {v(vLA)}, {s(sWS,4)}, {s(sT0)} offen {st_intra}')
        A.label(P + '_hk')
        tldump()
        A(f's_add_u32 {s(sStep)}, {s(sStep)}, 1')
        slots()
        A(f's_mov_b32 {s(sCnt)}, 0')
        sleep(dM)

        def ldM():
            A(f's_mov_b32 m0, {s(sL5)}')
            A(f's_add_u32 {s(sT0)}, {s(sL5)}, 4096')
            for i in range(4):
                A(f'buffer_load_dwordx4 {v(vLA)}, {s(sWS,4)}, {s(sMa)} offen offset:{1024*i} sc1 lds')
            A(f's_mov_b32 m0, {s(sT0)}')
            A('s_nop 0')
            A(f'buffer_load_dwordx4 {v(vLA)}, {s(sWS,4)}, {s(sMb)} offen sc1 lds')
        A.label(P + '_gather')
        ldM()
        stamp('Missued')
        delay(gap)
        A.label(P + '_pollM')
        ldM()
        A('s_waitcnt vmcnt(5)')
        stamp('Mvm')
        A(f'ds_read_b128 {v(vP,4)}, {v(vCan)}')
        A(f'ds_read_b128 {v(vP+4,4)}, {v(vCan)} offset:64')
        A('s_waitcnt lgkmcnt(0)')
        for x in maxchain(range(vP, vP + 8), t0, t1):
            A(x)
        A(f's_cbranch_vccz {P}_b1' if not solo else f's_branch {P}_b1')
        timeout(P + '_pollM', 0)
        A.label(P + '_retry')
        for x in maxchain(range(vAf, vAf + 40), t0, t1):
            A(x)
        A(f's_cbranch_vccz {P}_mem_ok')
        A(f'v_mov_b32 {v(t0)}, {s(sRt)}')
        A(f'ds_write_b32 {v(vL4)}, {v(t0)} offset:{LDS_MISC}')
        A(f's_branch {P}_mem_ok')
        A.label(P + '_redo')
        for i in range(12):
            A(f'v_mov_b32 {v(vQ+i)}, 0')
        A('s_waitcnt vmcnt(0) lgkmcnt(0)')
        if cnt:
            A(f's_add_u32 {s(sAcc+3)}, {s(sAcc+3)}, 1')
        A(f's_add_u32 {s(sRt)}, {s(sRt)}, 1')
        A(f's_cmp_ge_u32 {s(sRt)}, 0x20000')
        A(f's_cbranch_scc1 {fail}')
        A(f's_mov_b32 {s(sCnt)}, 0')
        A(f's_cmp_ge_u32 {s(sWave)}, 2')
        A(f's_cbranch_scc1 {P}_b1')
        A(f's_branch {P}_gather')
        A.label(P + '_kv1')
        kv_wait(P + '_kv1w', 2)
        A(f's_branch {P}_kv1e')
        A.label(P + '_againV')
        timeout(P + '_pollV')
        A.label(P + '_soft')
        A('.pad ' + DUM)
        for t in range(4, 10):
            smv(t)
        A('s_waitcnt lgkmcnt(0)')
        A(f'v_cmp_eq_u32 vcc, {s(sRt)}, {v(t4)}')
        for i in range(4):
            A(f'v_mov_b32 {v(vK+i)}, 0')
        A(f's_cbranch_vccnz {P}_redo')
        vtail()
        delay(dS)
        sset = [[vAf, vAf + 4, vAf + 8, vAf + 12], [vP, vP + 4, vP + 8, vP + 12]]

        def ldS(k_):
            for c in range(3):
                A(f'buffer_load_dwordx4 {v(sset[k_][c],4)}, {v(vLA)}, {s(sWS,4)}, {s(sSg)} offen offset:{1280*c} sc1')
            for c in range(3):
                A(f'buffer_load_dword {v(sset[k_][3]+c)}, {v(vL4)}, {s(sWS,4)}, {s(sSg)} offen offset:{1280*c+1024} sc1')
        ldS(0)
        stamp('Sissued')
        fill(gapS // 4)
        A.label(P + '_pollS')
        vY = vAf + 32; vYT = vAf + 36
        for k_ in range(2):
            ldS(k_ ^ 1)
            A('s_waitcnt vmcnt(6)')
            X = sset[k_]
            for i in range(4):
                A(f'v_add_f32 {v(vY+i)}, {v(X[0]+i)}, {v(X[1]+i)}')
            A(f'v_add_f32 {v(vYT)}, {v(X[3])}, {v(X[3]+1)}')
            for i in range(4):
                A(f'v_add_f32 {v(vY+i)}, {v(vY+i)}, {v(X[2]+i)}')
            A(f'v_add_f32 {v(vYT)}, {v(vYT)}, {v(X[3]+2)}')
            A(f'v_max3_f32 {v(t0)}, {v(vY)}, {v(vY+1)}, {v(vYT)}')
            A(f'v_max3_f32 {v(t0)}, {v(t0)}, {v(vY+2)}, {v(vY+3)}')
            A(f'v_add_f32 {v(t2)}, {v(vY)}, {v(vY+1)}')
            A(f'v_add_f32 {v(t3)}, {v(vY+2)}, {v(vY+3)}')
            A(f'v_max_f32_dpp {v(t0)}, {v(t0)}, {v(t0)} row_ror:8 row_mask:0xf bank_mask:0xf')
            A(f'v_add_f32 {v(t2)}, {v(t2)}, {v(vYT)}')
            A(f'v_cmp_u_f32 vcc, {v(t2)}, {v(t3)}')
            A(f'v_mov_b32 {v(t1)}, {v(t0)}')
            A(f's_cbranch_vccz {P}_haveS' if not solo else f's_branch {P}_haveS')
            for x in maxchain(range(X[0], X[0] + 15), t2, t3):
                A(x)
            A(f's_cbranch_vccz {P}_haveS')
            if cnt:
                A(f's_add_u32 {s(sAcc+1)}, {s(sAcc+1)}, 1')
        timeout(P + '_pollS')
        A.label(P + '_haveS')
        stamp('Slds')

        def ldV1(c):
            A(f'buffer_load_dword {v(vVm+2*c)}, {v(vVMld)}, {s(sWS,4)}, {s(sVM)} offen offset:{256*c} sc1')
        ldV1(0)
        A(f'v_permlane16_swap_b32 {v(t0)}, {v(t1)}')
        A(f'v_max_f32 {v(t0)}, {v(t0)}, {v(t1)}')
        A(f'v_mov_b32 {v(t1)}, {v(t0)}')
        ldV1(1); ldV1(2)
        A(f'v_permlane32_swap_b32 {v(t0)}, {v(t1)}')
        A(f'v_max_f32 {v(t0)}, {v(t0)}, {v(t1)}')
        stamp(3)
        A(f'v_mul_f32 {v(t0)}, {s(sScale)}, {v(t0)}')
        for r in range(5):
            A(f'v_fma_f32 {v(vY+r)}, {v(vY+r)}, {s(sScale)}, -{v(t0)}')
        for r in range(5):
            A(f'v_exp_f32 {v(vY+r)}, {v(vY+r)}')
        A(f'v_cvt_pk_bf16_f32 {v(vPx)}, {v(vY)}, {v(vY+1)}')
        A(f'v_cvt_pk_bf16_f32 {v(vPx+1)}, {v(vY+2)}, {v(vY+3)}')
        A(f'v_mov_b32_dpp {v(t2)}, {v(vYT)} row_ror:8 row_mask:0xf bank_mask:0xf')
        A(f'v_mov_b32_dpp {v(vPx+2)}, {v(vPx)} row_ror:8 row_mask:0xf bank_mask:0xf')
        A(f'v_mov_b32_dpp {v(vPx+3)}, {v(vPx+1)} row_ror:8 row_mask:0xf bank_mask:0xf')
        A(f'v_cvt_pk_bf16_f32 {v(vPm)}, {v(vYT)}, {v(t2)}')
        A(f'ds_write_b128 {v(vLA)}, {v(vPx,4)} offset:{LDS_S}')
        A(f'ds_write_b32 {v(vL4)}, {v(vPm)} offset:{LDS_S + 1024}')
        A('s_waitcnt lgkmcnt(0)')
        stamp('Svm')
        A('s_barrier')
        A('s_waitcnt vmcnt(3)')
        for u in range(3):
            A(f'v_mfma_f32_16x16x32_bf16 {v(vO+4*u,4)}, {v(vVX+4*u,4)}, {v(vPx,4)}, 0')
        A.label(P + '_chkV3')
        A('s_waitcnt vmcnt(0)')
        A(f'v_max3_u32 {v(t3)}, {v(vVm)}, {v(vVm+2)}, {v(vVm+4)}')
        A(f'v_cmp_eq_u32 vcc, -1, {v(t3)}')
        A(f's_cbranch_vccz {P}_pvm' if not solo else f's_branch {P}_pvm')
        ldV()
        timeout(P + '_chkV3')
        A('.pad')
        A.label(P + '_sc0')
        A(f'v_mfma_f32_16x16x32_bf16 {v(vQ,4)}, {v(vTr,4)}, {v(vTr,4)}, 0')
        A(f'v_mfma_f32_16x16x32_bf16 {v(vQ,4)}, {v(vTr+4,4)}, {v(vTr+4,4)}, {v(vQ,4)}')
        A(f's_branch {P}_sc1')
        A.label(P + '_againC')
        for x in maxchain(range(vR, vR + 32), t0, t1):
            A(x)
        A(f's_cbranch_vccz {P}_have_c')
        timeout(P + '_pollC', 2)
        A.label(P + '_reduce')
        A(f's_cmp_ge_u32 {s(sRank)}, 20')
        A(f's_cbranch_scc1 {P}_nored')
        sleep(dC)
        A(f's_mov_b32 {s(sCnt)}, 0')
        A.label(P + '_pollC')
        for u in range(8):
            A(f'buffer_load_dwordx4 {v(vR+4*u,4)}, {v(vCld if u < 4 else vCld2)}, {s(sWS,4)}, {s(sC)} offen offset:{1024*(u&3)} sc1')
        for u in range(8):
            A(f's_waitcnt vmcnt({7-u})')
            A(f'v_mfma_f32_16x16x32_bf16 {v(vTr,4)}, {v(vR+4*u,4)}, {v(vSel+4*(u>>2),4)}, {v(vTr,4) if u else 0}')
        stamp('Cvm')
        A(f'v_permlane32_swap_b32 {v(vTr)}, {v(vTr+2)}')
        A(f'v_permlane32_swap_b32 {v(vTr+1)}, {v(vTr+3)}')
        A(f'v_add_f32 {v(vTr)}, {v(vTr)}, {v(vTr+2)}')
        A(f'v_add_f32 {v(vTr+1)}, {v(vTr+1)}, {v(vTr+3)}')
        A(f'v_cmp_u_f32 vcc, {v(vTr)}, {v(vTr+1)}')
        A(f'v_cvt_pk_bf16_f32 {v(t2)}, {v(vTr)}, {v(vTr+1)}')
        A(f's_cbranch_vccnz {P}_againC' if not solo else 's_nop 0')
        A.label(P + '_have_c')
        stamp(6)
        A(f'buffer_store_dword {v(t2)}, {v(vMst)}, {s(sWS,4)}, {s(sMn)} offen {st_intra}')
        if log:
            A(f'buffer_store_dword {v(t2)}, {v(vMst)}, {s(sWS,4)}, {s(sLog)} offen')
            A(f's_add_u32 {s(sLog)}, {s(sLog)}, 10240')
        stamp(7)
        A.label(P + '_nored')
        if True:
            A(f's_cmp_lt_u32 {s(sRank)}, 20')
            A(f's_cbranch_scc1 {P}_nw')
            A('s_waitcnt vmcnt(0)')
            A.label(P + '_nw')
        tldump()
        A(f's_add_u32 {s(sStep)}, {s(sStep)}, 1')
        slots()
        A(f's_branch {P}_b1')


    steps('F', '')
    if both:
        steps('S', 'sc1')
    A('.pad')
    A.label('L_ch_last')
    A(f'buffer_store_dword {v(vVp)}, {v(vVMst)}, {s(sWS,4)}, {s(sVMo)} offen sc1')
    A(f's_cmp_lg_u32 {s(sWave)}, 1')
    A('s_cbranch_scc1 L_ch_l1')
    k_pub()
    A.label('L_ch_l1')
    A('s_waitcnt vmcnt(0) lgkmcnt(0)')
    A('s_barrier')
    A(f's_cmp_lg_u32 {s(sWave)}, 0')
    A('s_cbranch_scc1 L_ch_l2')
    A('s_mov_b64 exec, 1')
    A(f'v_mov_b32 {v(t0)}, 64')
    A(f'buffer_store_dword {v(t0)}, {v(vL4)}, {s(sWS,4)}, {s(sFlCh)} offen sc1')
    A('s_mov_b64 exec, -1')
    A.label('L_ch_l2')
    if tl or cyc or cnt:
        A(f's_memrealtime {s(sTm,2)}')
        A('s_waitcnt lgkmcnt(0)')
        A(f's_sub_u32 {s(sT0)}, {s(sTm)}, {s(sTm2)}')
        A(f's_lshl_b32 {s(sT1)}, {s(e.sRole)}, 2')
        A(f's_add_u32 {s(sT1)}, {s(sT1)}, {s(sWave)}')
        A(f's_lshl_b32 {s(sT1)}, {s(sT1)}, 7')
        A(f's_add_u32 {s(sT1)}, {s(sT1)}, {TRACE_OFF}')
        A(f'v_mov_b32 {v(t1)}, 0')
        for i in range(12 if cyc else 0):
            A(f'v_mov_b32 {v(t0)}, {s(sTr+2*i)}')
            A(f'buffer_store_dword {v(t0)}, {v(t1)}, {s(sWS,4)}, {s(sT1)} offen offset:{4*i}')
        for i, r in enumerate((sAcc, sAcc + 1, sAcc + 2, sAcc + 3, sT0, sTm2, sTm)):
            A(f'v_mov_b32 {v(t0)}, {s(r)}')
            A(f'buffer_store_dword {v(t0)}, {v(t1)}, {s(sWS,4)}, {s(sT1)} offen offset:{48+4*i}')
    A('s_waitcnt vmcnt(0)')
    A(f's_branch {done}')
```

```python
from common import *


def gen_kv(A, e, isV, fail='L_fail', done='L_exit', fill=True, prof=False, nodma=False, nomid=False):
    pfx = 'L_v' if isV else 'L_k'
    SA = Alloc(e.sFree, 100)
    sW = SA(4, 4); sX = SA(4, 4); sP = SA(4, 4)
    sH = SA(); sSeg = SA(); sSrc = SA(); sDst = [SA(), SA()]; sOut = SA(); sC = SA(); sFl = SA()
    sT = [SA(), SA(), SA()]
    VA = Alloc(1, 256)
    vSrc = VA(10); vRd = VA(4); vLA = VA(); vFill = [VA(), VA(), VA()]; vOnes = VA(4); vZ = VA()
    vt = VA(8); vt = list(range(vt, vt + 8))
    vXf = VA(4 * 6)
    vAccs = [VA(24), VA(24)]
    vPk = VA(12)

    def wreg(tl, t, hf):
        return a((tl * 20 + t) * 4 + 2 * hf, 2)

    def wfrag(tl, t):
        return a((tl * 20 + t) * 4, 4)
    A(f's_and_b32 {s(sH)}, {s(e.sRole)}, 31')
    A(f's_load_dwordx2 {s(sP,2)}, s[0:1], {32 if isV else 24}')
    A(f's_load_dwordx2 {s(sP+2,2)}, s[0:1], 0')
    A('s_waitcnt lgkmcnt(0)')
    srd(A, sW, sP, 7864320)
    srd(A, sX, sP + 2, 2621440)
    dofill = fill and not isV
    nfill = 3 if dofill else 0
    if dofill:
        for k in range(3):
            A(f's_add_u32 {s(sT[0])}, {s(e.sWave)}, {4*k}')
            A(f's_lshl_b32 {s(sT[0])}, {s(sT[0])}, 3')
            A(f'v_bfe_u32 {v(vt[0])}, v0, 3, 3')
            A(f'v_add_u32 {v(vt[0])}, {s(sT[0])}, {v(vt[0])}')
            A(f'v_cmp_gt_u32 vcc, 80, {v(vt[0])}')
            A(f'v_lshrrev_b32 {v(vt[1])}, 1, {v(vt[0])}')
            A(f'v_lshlrev_b32 {v(vt[1])}, 14, {v(vt[1])}')
            A(f'v_and_b32 {v(vt[0])}, 1, {v(vt[0])}')
            A(f'v_lshl_add_u32 {v(vt[1])}, {v(vt[0])}, 12, {v(vt[1])}')
            A(f'v_and_b32 {v(vt[0])}, 7, v0')
            A(f'v_lshl_add_u32 {v(vt[1])}, {v(vt[0])}, 4, {v(vt[1])}')
            A(f's_lshl_b32 {s(sT[0])}, {s(sH)}, 7')
            A(f'v_add_u32 {v(vt[1])}, {s(sT[0])}, {v(vt[1])}')
            A(f'v_mov_b32 {v(vt[0])}, {OOB}')
            A(f'v_cndmask_b32 {v(vFill[k])}, {v(vt[0])}, {v(vt[1])}, vcc')
        for i in range(4):
            A(f'v_mov_b32 {v(vOnes+i)}, -1')
    if dofill:
        for par in range(2):
            A(f's_mov_b32 {s(sC)}, {CF_OFF + 8192 * par}')
            for k in range(3):
                A(f'buffer_store_dwordx4 {v(vOnes,4)}, {v(vFill[k])}, {s(e.sWS,4)}, {s(sC)} offen sc1')

    def arrived():
        if not dofill:
            return
        l = A.newlabel(pfx + '_a')
        A(f's_cmp_lg_u32 {s(e.sWave)}, 0')
        A(f's_cbranch_scc1 {l}')
        A(f'v_mov_b32 {v(vt[6])}, 1')
        A(f'v_mov_b32 {v(vt[7])}, {DBG_ARR + 4}')
        A('s_mov_b64 exec, 1')
        A(f'buffer_atomic_add {v(vt[6])}, {v(vt[7])}, {s(e.sDBG,4)}, 0 offen sc1')
        A('s_mov_b64 exec, -1')
        A.label(l)
    stage_w192(A, e, sW, sH, sT, vt, wreg, pfx, last=arrived)
    x_consts(A, e, vSrc, vRd, vt[0], vt[1], sT[0])
    A(f's_mul_i32 {s(sSrc)}, {s(e.sWave)}, 10240')
    A(f's_mov_b32 {s(sDst[0])}, {s(sSrc)}')
    A(f's_add_u32 {s(sDst[1])}, {s(sSrc)}, 40960')
    for g_ in x_dma(vSrc, sX, sSrc, sDst[0]):
        for x in g_:
            A(x)
    A(f's_add_u32 {s(sSrc)}, {s(sSrc)}, 40960')
    A(f'v_and_b32 {v(vLA)}, 63, v0')
    A(f'v_lshlrev_b32 {v(vLA)}, 4, {v(vLA)}')
    A(f's_mul_i32 {s(sOut)}, {s(sH)}, {SEG_H}')
    A(f's_mul_i32 {s(sT[0])}, {s(e.sWave)}, 3072')
    A(f's_add_u32 {s(sOut)}, {s(sOut)}, {s(sT[0])}')
    A(f's_add_u32 {s(sOut)}, {s(sOut)}, {VX_OFF if isV else KX_OFF}')
    A(f's_lshl_b32 {s(sFl)}, {s(sH)}, 7')
    A(f's_lshl_b32 {s(sT[0])}, {s(e.sWave)}, 2')
    A(f's_add_u32 {s(sFl)}, {s(sFl)}, {s(sT[0])}')
    A(f's_add_u32 {s(sFl)}, {s(sFl)}, {FL_KV + (16 if isV else 0)}')
    A(f'v_mov_b32 {v(vZ)}, 0')
    e.mark(A, 2, vt[0], vt[1])
    wait_go(A, pfx + '_go', e, vt[0], vt[1], fail)
    fl_place(A, e, (sFl,), sT[0])
    e.mark(A, 3, vt[0], vt[1])
    if e.marks:
        A('s_waitcnt vmcnt(0)')
    A(f's_mov_b32 {s(sSeg)}, 0')
    if prof:
        A('s_memtime s[80:81]'); A('s_memrealtime s[82:83]')

    def publish(val):
        A(f'v_mov_b32 {v(vt[0])}, {val}')
        A('s_mov_b64 exec, 1')
        A(f'buffer_store_dword {v(vt[0])}, {v(vZ)}, {s(e.sWS,4)}, {s(sFl)} offen sc1')
        A('s_mov_b64 exec, -1')

    def epilogue(vAcc):
        out = []
        for tl in range(3):
            out.append([f'v_cvt_pk_bf16_f32 {v(vPk+4*tl+q)}, {v(vAcc+8*tl+2*q)}, {v(vAcc+8*tl+2*q+1)}' for q in range(2)])
            out.append([f'v_cvt_pk_bf16_f32 {v(vPk+4*tl+q)}, {v(vAcc+8*tl+2*q)}, {v(vAcc+8*tl+2*q+1)}' for q in range(2, 4)])
            out.append([f'buffer_store_dwordx4 {v(vPk+4*tl,4)}, {v(vLA)}, {s(e.sWS,4)}, {s(sOut)} offen offset:{1024*tl} sc1'])
        out[-1].append(f's_add_u32 {s(sOut)}, {s(sOut)}, {SEG_ALL}')
        for k in range(nfill):
            out.append([f'buffer_store_dwordx4 {v(vOnes,4)}, {v(vFill[k])}, {s(e.sWS,4)}, {s(sC)} offen sc1'])
        return out

    def segment(b, first):
        vAcc = vAccs[b]
        A('s_waitcnt vmcnt(1)')
        A('s_barrier')
        buf = 40960 * b
        dma = x_dma(vSrc, sX, sSrc, sDst[b ^ 1])
        for t in range(2):
            for xt in range(2):
                A(x_read(vXf + 8 * t + 4 * xt, vRd, t, xt, buf))
        epi = [] if first else epilogue(vAccs[b ^ 1])
        if dofill and not first:
            c_base(A, sC, sSeg, e.sPar, sT[0], sT[1])
        for t in range(20):
            k = t % 3
            if t == 16 and not first:
                A('s_waitcnt vmcnt(10)')
                publish(s(sSeg))
            if t + 2 < 20:
                for xt in range(2):
                    A(x_read(vXf + 8 * ((t + 2) % 3) + 4 * xt, vRd, t + 2, xt, buf))
            A(f's_waitcnt lgkmcnt({min(4, 2 * (19 - t))})')
            for tl in range(3):
                for xt in range(2):
                    acc = v(vAcc + 8 * tl + 4 * xt, 4)
                    xf = v(vXf + 8 * k + 4 * xt, 4)
                    ops = (xf, wfrag(tl, t)) if isV else (wfrag(tl, t), xf)
                    A(f'v_mfma_f32_16x16x32_bf16 {acc}, {ops[0]}, {ops[1]}, {acc if t else 0}')
                work = epi if epi else dma
                if work and (t > 0 or tl > 0 or first) and (epi or tl != 1):
                    for x in work.pop(0):
                        A(x)
        assert not epi and not dma
        A(f's_add_u32 {s(sSrc)}, {s(sSrc)}, 40960')
        A(f's_add_u32 {s(sSeg)}, {s(sSeg)}, 1')

    A('s_waitcnt vmcnt(0)')
    segment(0, True)
    if dofill:
        c_base(A, sC, sSeg, e.sPar, sT[0], sT[1])
    for g_ in epilogue(vAccs[0]):
        for x in g_:
            A(x)
    A('s_waitcnt vmcnt(0)')
    publish(1)
    segment(1, True)
    A('s_waitcnt vmcnt(0)')
    A.label(pfx + '_loop')
    segment(0, False)
    segment(1, False)
    A(f's_cmp_lt_u32 {s(sSeg)}, 64')
    A(f's_cbranch_scc1 {pfx}_loop')
    for g_ in epilogue(vAccs[1])[:9]:
        for x in g_:
            A(x)
    A('s_waitcnt vmcnt(0)')
    if prof:
        A('s_memtime s[84:85]'); A('s_memrealtime s[86:87]'); A('s_waitcnt lgkmcnt(0)')
        A('s_sub_u32 s84, s84, s80'); A('s_sub_u32 s86, s86, s82')
        A(f'v_mov_b32 {v(vt[0])}, s84'); A(f'v_mov_b32 {v(vt[1])}, s86'); A(f'v_mov_b32 {v(vt[2])}, {64 + (8 if isV else 0)}')
        A(f'buffer_store_dwordx2 {v(vt[0],2)}, {v(vt[2])}, {s(e.sDBG,4)}, 0 offen')
    publish(64)
    A('s_waitcnt vmcnt(0)')
    A(f's_branch {done}')
```

```python
from common import *
from role_qa import cached_wait

CP = 5152
LU = 32
KP = 4160
LKC = LU + 16 * CP


def gen_conv(A, e, sTask, fail):
    pfx = 'L_cv'
    SA = Alloc(e.sFree + 1, 102)
    sK = SA(4, 4); sV = SA(4, 4); sF = SA(4, 4); sP = SA(12, 4)
    sCh = SA(); sI = SA(); sD = SA(); sKc = SA(); sSrc = SA()
    sT = [SA(), SA(), SA()]
    VA = Alloc(1, 256)
    vLA = VA(); vB0 = VA(); vB4 = VA(); vBm = VA(); vW = VA(); vA = VA(); vBL = VA(); vBU = VA(); vZa = VA(); vE = VA()
    vt = VA(8); vt = list(range(vt, vt + 8))
    t0, t1, t2, t3 = vt[:4]
    A(f's_load_dwordx8 {s(sP,8)}, s[0:1], 64')
    A(f's_load_dwordx2 {s(sP+8,2)}, s[0:1], 96')
    A('s_waitcnt lgkmcnt(0)')
    srd(A, sK, sP, 2621440)
    srd(A, sV, sP + 2, 2621440)
    srd(A, sF, sP + 4, 5120)
    A(f'v_and_b32 {v(vLA)}, 63, v0')
    P1 = Alloc(VA.p, 256)
    vWt = P1(32); vKr = P1(44); vVr = P1(32); vk = P1(22); vv = P1(16); vo = P1(8)
    A(f'v_and_b32 {v(t0)}, 1, v0')
    A(f's_lshl_b32 {s(sT[0])}, {s(sTask)}, 7')
    A(f'v_lshlrev_b32 {v(t1)}, 6, {v(t0)}')
    for i in range(4):
        A(f'buffer_load_dwordx4 {v(vKr+4*i,4)}, {v(t1)}, {s(sF,4)}, {s(sT[0])} offen offset:{16*i}')
    A(f'v_mov_b32 {v(vo)}, 0')
    for i in range(1, 4):
        A(f'v_mov_b32 {v(vo+i)}, 0')
    A(f'v_and_b32 {v(t2)}, 15, v0')
    A(f'v_mul_u32_u24 {v(t3)}, {CP}, {v(t2)}')
    A(f'ds_write_b128 {v(t3)}, {v(vo,4)} offset:{LU - 16}')
    A(f'v_mul_u32_u24 {v(t3)}, {KP}, {v(t2)}')
    A(f'v_bfe_u32 {v(t2)}, v0, 4, 2')
    A(f'v_lshl_add_u32 {v(t3)}, {v(t2)}, 4, {v(t3)}')
    A(f'v_add_u32 {v(t3)}, {LKC}, {v(t3)}')
    A(f'ds_write_b128 {v(t3)}, {v(vo,4)}')
    A('s_waitcnt vmcnt(0)')
    for c in range(8):
        for j in range(2):
            A(f'v_lshlrev_b32 {v(vWt+4*c+2*j)}, 16, {v(vKr+2*c+j)}')
            A(f'v_and_b32 {v(vWt+4*c+2*j+1)}, 0xffff0000, {v(vKr+2*c+j)}')
    A(f's_mov_b32 {s(sI)}, 0')
    A.label(pfx + '_p1')
    A(f's_lshl_b32 {s(sT[0])}, {s(sI)}, 2')
    A(f's_add_u32 {s(sT[0])}, {s(sT[0])}, {s(e.sWave)}')
    A(f's_lshl_b32 {s(sT[0])}, {s(sT[0])}, 5')
    A(f'v_lshrrev_b32 {v(t1)}, 1, {v(vLA)}')
    A(f'v_add_u32 {v(t1)}, {s(sT[0])}, {v(t1)}')
    A(f's_lshl_b32 {s(sT[1])}, {s(sTask)}, 5')
    A(f'v_mul_u32_u24 {v(vB0)}, 10240, {v(t1)}')
    A(f'v_lshl_add_u32 {v(vB0)}, {v(t0)}, 4, {v(vB0)}')
    A(f'v_add_u32 {v(vB0)}, {s(sT[1])}, {v(vB0)}')
    A(f'v_add_u32 {v(vB4)}, 5120, {v(vB0)}')
    A(f'v_subrev_u32 {v(vBm)}, 3840, {v(vB0)}')
    A(f'v_cmp_eq_u32 vcc, 0, {v(t1)}')
    A(f'v_mov_b32 {v(t2)}, {OOB}')
    A(f'v_cndmask_b32 {v(vBm)}, {v(vBm)}, {v(t2)}, vcc')
    for j in range(11):
        base, off = (vBm, j) if j < 3 else (vB0, j - 3) if j < 7 else (vB4, j - 7)
        A(f'buffer_load_dwordx4 {v(vKr+4*j,4)}, {v(base)}, {s(sK,4)}, 0 offen offset:{1280*off}')
    for j in range(8):
        A(f'buffer_load_dwordx4 {v(vVr+4*j,4)}, {v(vB0 if j < 4 else vB4)}, {s(sV,4)}, 0 offen offset:{1280*(j&3)}')
    A(f'v_mul_u32_u24 {v(vW)}, {8*CP}, {v(t0)}')
    A(f'v_lshrrev_b32 {v(t2)}, 3, {v(t1)}')
    A(f'v_mul_u32_u24 {v(t2)}, 160, {v(t2)}')
    A(f'v_bfe_u32 {v(t3)}, {v(t1)}, 2, 1')
    A(f'v_lshl_add_u32 {v(t2)}, {v(t3)}, 6, {v(t2)}')
    A(f'v_and_b32 {v(t3)}, 3, {v(t1)}')
    A(f'v_xor_b32 {v(t3)}, 3, {v(t3)}')
    A(f'v_lshl_add_u32 {v(t2)}, {v(t3)}, 4, {v(t2)}')
    A(f'v_add3_u32 {v(vW)}, {v(vW)}, {v(t2)}, {LU}')
    A('s_waitcnt vmcnt(0)')
    for i in range(4):
        for hi in range(2):
            c = 2 * i + hi
            for j in range(11):
                A(f'v_lshlrev_b32 {v(vk+j)}, 16, {v(vKr+4*j+i)}' if hi == 0 else f'v_and_b32 {v(vk+j)}, 0xffff0000, {v(vKr+4*j+i)}')
            for j in range(8):
                A(f'v_lshlrev_b32 {v(vv+j)}, 16, {v(vVr+4*j+i)}' if hi == 0 else f'v_and_b32 {v(vv+j)}, 0xffff0000, {v(vVr+4*j+i)}')
            for j in range(8):
                A(f'v_mul_f32 {v(vv+8+j)}, {v(vk+j)}, {v(vWt+4*c+3)}')
            for d in (2, 1, 0):
                for j in range(8):
                    A(f'v_fmac_f32 {v(vv+8+j)}, {v(vk+j+3-d)}, {v(vWt+4*c+d)}')
            for j in range(8):
                A(f'v_mul_f32 {v(vv+j)}, {v(vv+j)}, {v(vv+8+j)}')
            o = vo + 4 * hi
            for q in range(4):
                A(f'v_cvt_pk_bf16_f32 {v(o+q)}, {v(vv+7-2*q)}, {v(vv+6-2*q)}')
            A(f'ds_write_b128 {v(vW)}, {v(o,4)} offset:{CP*c}')
    A(f's_add_u32 {s(sI)}, {s(sI)}, 1')
    A(f's_cmp_lt_u32 {s(sI)}, 2')
    A(f's_cbranch_scc1 {pfx}_p1')
    e.mark(A, 8, t2, t3)
    P2 = Alloc(VA.p, 256)
    vAcc = P2(32); vAf = P2(24); vBf = [P2(16), P2(16)]; vU = P2(16); vH = P2(2)
    srd(A, sK, sP + 6, 2621440)
    A(f's_mul_i32 {s(sKc)}, {s(e.sWave)}, {4*KP}')
    A(f's_add_u32 {s(sKc)}, {s(sKc)}, {LKC}')
    A(f'v_and_b32 {v(t0)}, 15, v0')
    A(f'v_bfe_u32 {v(t1)}, v0, 4, 2')
    A(f'v_add_u32 {v(t2)}, 1, {v(t0)}')
    A(f'v_and_b32 {v(t3)}, 3, {v(t2)}')
    A(f'v_sub_u32 {v(t2)}, {v(t2)}, {v(t3)}')
    A(f'v_lshl_add_u32 {v(t2)}, {v(t1)}, 3, {v(t2)}')
    A(f'v_lshlrev_b32 {v(t2)}, 1, {v(t2)}')
    A(f'v_mul_u32_u24 {v(t3)}, {KP}, {v(t3)}')
    A(f'v_add3_u32 {v(vA)}, {v(t2)}, {v(t3)}, {s(sKc)}')
    A(f'v_mul_u32_u24 {v(vE)}, 160, {v(t0)}')
    A(f'v_lshlrev_b32 {v(vLA)}, 4, {v(vLA)}')
    A(f's_mov_b32 {s(sI)}, 0')
    A('s_waitcnt lgkmcnt(0)')
    A('s_barrier')
    A.label(pfx + '_ch')
    A(f's_lshl_b32 {s(sCh)}, {s(e.sWave)}, 2')
    A(f's_add_u32 {s(sCh)}, {s(sCh)}, {s(sI)}')
    A(f's_lshl_b32 {s(sT[0])}, {s(sTask)}, 4')
    A(f's_add_u32 {s(sT[0])}, {s(sT[0])}, {s(sCh)}')
    A(f's_lshl_b32 {s(sSrc)}, {s(sT[0])}, 12')
    A(f's_and_b32 {s(sT[1])}, {s(sT[0])}, 0xfffe')
    A(f's_lshl_b32 {s(sT[1])}, {s(sT[1])}, 1')
    A(f's_load_dword {s(sD)}, {s(sP+8,2)}, {s(sT[1])}')
    A(f'v_mov_b32 {v(t2)}, 0')
    A(f'buffer_load_dwordx2 {v(vH,2)}, {v(t2)}, {s(sK,4)}, {s(sSrc)} offen')
    for sh in range(4):
        A(f's_add_u32 m0, {s(sKc)}, {sh*KP + 64}')
        A(f's_add_u32 {s(sT[1])}, {s(sSrc)}, {2*sh}')
        for i in range(4):
            A(f'buffer_load_dwordx4 {v(vLA)}, {s(sK,4)}, {s(sT[1])} offen offset:{1024*i} lds')
    A(f's_mul_i32 {s(sT[2])}, {s(sCh)}, {CP}')
    A(f's_add_u32 {s(sT[2])}, {s(sT[2])}, {LU}')
    A(f'v_lshl_add_u32 {v(vBL)}, {v(t1)}, 4, {v(vE)}')
    A(f'v_add_u32 {v(vBL)}, {s(sT[2])}, {v(vBL)}')
    A(f's_sub_u32 {s(sT[1])}, {s(sT[2])}, 16')
    A(f'v_mov_b32 {v(vZa)}, {s(sT[1])}')
    A('s_waitcnt lgkmcnt(0)')
    A(f's_and_b32 {s(sT[0])}, {s(sT[0])}, 1')
    A(f's_lshl_b32 {s(sT[0])}, {s(sT[0])}, 4')
    A(f's_lshr_b32 {s(sD)}, {s(sD)}, {s(sT[0])}')
    A(f's_lshl_b32 {s(sD)}, {s(sD)}, 16')
    A('s_waitcnt vmcnt(16)')
    A(f'v_and_b32 {v(t2)}, 3, v0')
    A(f'v_lshlrev_b32 {v(t3)}, 4, {v(t2)}')
    A(f'v_sub_u32 {v(t3)}, 48, {v(t3)}')
    A(f'v_lshlrev_b64 {v(vH,2)}, {v(t3)}, {v(vH,2)}')
    A(f'v_lshlrev_b64 {v(vH,2)}, 16, {v(vH,2)}')
    A(f'v_mul_u32_u24 {v(t2)}, {KP}, {v(t2)}')
    A(f'v_add_u32 {v(t2)}, {s(sKc)}, {v(t2)}')
    A(f'ds_write_b64 {v(t2)}, {v(vH,2)} offset:56')
    A('s_waitcnt vmcnt(0)')

    def rdB(win, wp):
        dst = v(vBf[win] + 4 * (wp % 4), 4)
        rel = (wp >> 1) * 160 + (wp & 1) * 64 + win * 16 * 160
        if rel >= 0:
            return [f'ds_read_b128 {dst}, {v(vBL)} offset:{rel}']
        tmp = vt[4 + win]
        return [f'v_subrev_u32 {v(tmp)}, {-rel}, {v(vBL)}', f'v_max_i32 {v(tmp)}, {v(tmp)}, {v(vZa)}',
                f'ds_read_b128 {dst}, {v(tmp)}']

    def rdA(d):
        return [f'ds_read_b64 {v(vAf + 8*(d % 3) + 4*mt + 2*h_, 2)}, {v(vA)} offset:{64*d + 32*mt + 8*h_}'
                for mt in range(2) for h_ in range(2)]

    def reads(d):
        out = rdA(d) + rdB(1, -d)
        if d < 32:
            out += rdB(0, -d)
        return out

    def nlds(d):
        return 0 if d > 63 else (6 if d < 32 else 5)
    for x in rdB(1, 1) + rdB(0, 1) + reads(0) + reads(1):
        A(x)
    for d in range(64):
        pend = reads(d + 2) if d + 2 < 64 else []
        A(f's_waitcnt lgkmcnt({nlds(d + 1)})')
        mf = []
        for win in ((1, 0) if d < 32 else (1,)):
            for b in range(2):
                for mt in range(2):
                    acc = v(vAcc + 16 * win + 8 * b + 4 * mt, 4)
                    mf.append(f'v_mfma_f32_16x16x32_bf16 {acc}, {v(vAf + 8*(d % 3) + 4*mt, 4)}, '
                              f'{v(vBf[win] + 4*((b - d) % 4), 4)}, {acc if d else 0}')
        per = -(-len(pend) // len(mf))
        for x in mf:
            A(x)
            for _ in range(per):
                if pend:
                    A(pend.pop(0))
    A(f'v_lshlrev_b32 {v(t2)}, 3, {v(t1)}')
    A(f'v_add3_u32 {v(t3)}, {v(vE)}, {v(t2)}, {s(sT[2])}')
    A(f'v_sub_u32 {v(t2)}, {v(vE)}, {v(t2)}')
    A(f'v_add_u32 {v(t2)}, {s(sT[2])}, {v(t2)}')
    tiles = [(win, b, mt) for win in range(2) for b in range(2) for mt in range(2)]
    for i, (win, b, mt) in enumerate(tiles):
        A(f'ds_read_b64 {v(vU+2*i,2)}, {v(t2)} offset:{win*2560 + b*64 + 56 - 32*mt}')
    A('s_waitcnt lgkmcnt(0)')
    for i, (win, b, mt) in enumerate(tiles):
        acc = vAcc + 16 * win + 8 * b + 4 * mt
        x0, x1 = vt[4], vt[5]
        for r in range(4):
            src = vU + 2 * i + (1 - (r >> 1))
            x = (x0, x1)[r & 1]
            A(f'v_and_b32 {v(x)}, 0xffff0000, {v(src)}' if r % 2 == 0 else f'v_lshlrev_b32 {v(x)}, 16, {v(src)}')
            A(f'v_fmac_f32 {v(acc+r)}, {s(sD)}, {v(x)}')
        A(f'v_cvt_pk_bf16_f32 {v(acc)}, {v(acc)}, {v(acc+1)}')
        A(f'v_cvt_pk_bf16_f32 {v(acc+1)}, {v(acc+2)}, {v(acc+3)}')
        A(f'ds_write_b64 {v(t3)}, {v(acc,2)} offset:{win*2560 + b*64 + 32*mt}')
    A(f's_add_u32 {s(sI)}, {s(sI)}, 1')
    A(f's_cmp_lt_u32 {s(sI)}, 4')
    A(f's_cbranch_scc1 {pfx}_ch')
    e.mark(A, 9, t2, t3)
    A(f'v_bfe_u32 {v(t2)}, v0, 2, 4')
    A(f'v_mul_u32_u24 {v(t2)}, {CP}, {v(t2)}')
    A(f'v_and_b32 {v(t3)}, 3, v0')
    A(f'v_lshl_add_u32 {v(t2)}, {v(t3)}, 3, {v(t2)}')
    A(f's_lshr_b32 {s(sT[0])}, {s(e.sWave)}, 1')
    A(f's_mul_i32 {s(sT[0])}, {s(sT[0])}, 160')
    A(f's_and_b32 {s(sT[1])}, {s(e.sWave)}, 1')
    A(f's_lshl_b32 {s(sT[1])}, {s(sT[1])}, 6')
    A(f's_add_u32 {s(sT[0])}, {s(sT[0])}, {s(sT[1])}')
    A(f's_add_u32 {s(sT[0])}, {s(sT[0])}, {LU}')
    A(f'v_add_u32 {v(t2)}, {s(sT[0])}, {v(t2)}')
    A(f's_lshl_b32 {s(sSrc)}, {s(sTask)}, 16')
    A(f's_lshl_b32 {s(sT[0])}, {s(e.sWave)}, 10')
    A(f's_add_u32 {s(sSrc)}, {s(sSrc)}, {s(sT[0])}')
    A(f's_add_u32 {s(sSrc)}, {s(sSrc)}, {Z_OFF}')
    A('s_waitcnt lgkmcnt(0)')
    A('s_barrier')
    for half in range(2):
        for i in range(8):
            for qt in range(2):
                A(f'ds_read_b64_tr_b16 {v(vAcc+4*i+2*qt,2)}, {v(t2)} offset:{320*(8*half+i) + 32*qt}')
            if i == 5:
                A('s_waitcnt lgkmcnt(8)')
        for i in range(8):
            A(f's_waitcnt lgkmcnt({min(14 - 2*i, 8)})')
            A(f'buffer_store_dwordx4 {v(vAcc+4*i,4)}, {v(vLA)}, {s(e.sWS,4)}, {s(sSrc)} offen sc1')
            A(f's_add_u32 {s(sSrc)}, {s(sSrc)}, 4096')
        A('s_waitcnt vmcnt(0)')
    A('s_barrier')
    A(f's_cmp_lg_u32 {s(e.sWave)}, 0')
    A(f's_cbranch_scc1 {pfx}_end')
    A(f's_lshl_b32 {s(sT[0])}, {s(sTask)}, 2')
    A(f's_add_u32 {s(sT[0])}, {s(sT[0])}, {FL_MISC + 256}')
    A(f'v_mov_b32 {v(t2)}, 1')
    A(f'v_mov_b32 {v(t3)}, 0')
    A('s_mov_b64 exec, 1')
    A(f'buffer_store_dword {v(t2)}, {v(t3)}, {s(e.sWS,4)}, {s(sT[0])} offen sc1')
    A('s_mov_b64 exec, -1')
    A.label(pfx + '_end')


def gen_gate(A, e, sTask, fail):
    pfx = 'L_g'
    SA = Alloc(e.sFree + 1, 102)
    sX = SA(4, 4); sW = SA(4, 4); sP = SA(4, 4); sG = SA(); sT = [SA(), SA()]
    VA = Alloc(1, 256)
    vA = VA(); vq = VA(); t0 = VA(); t1 = VA(); vGa = VA(); vAcc = VA(4)
    vW = VA(80); vX = VA(80)
    A(f's_load_dwordx2 {s(sP,2)}, s[0:1], 0')
    A(f's_load_dwordx2 {s(sP+2,2)}, s[0:1], 104')
    A('s_waitcnt lgkmcnt(0)')
    srd(A, sX, sP, 2621440)
    srd(A, sW, sP + 2, 1280)
    A(f'v_and_b32 {v(vq)}, 3, v0')
    A(f'v_lshlrev_b32 {v(vq)}, 4, {v(vq)}')
    for i in range(20):
        A(f'buffer_load_dwordx4 {v(vW+4*i,4)}, {v(vq)}, {s(sW,4)}, 0 offen offset:{64*i}')
    A(f'v_bfe_u32 {v(t0)}, v0, 2, 4')
    A(f'v_mul_u32_u24 {v(vA)}, 1280, {v(t0)}')
    A(f'v_add_u32 {v(vA)}, {v(vA)}, {v(vq)}')
    A(f'v_lshlrev_b32 {v(t0)}, 2, {v(t0)}')
    A(f'v_cmp_eq_u32 vcc, 0, {v(vq)}')
    A(f'v_mov_b32 {v(t1)}, {OOB}')
    A(f'v_cndmask_b32 {v(vGa)}, {v(t1)}, {v(t0)}, vcc')
    A(f's_sub_u32 {s(sG)}, {s(sTask)}, 40')
    A(f's_lshl_b32 {s(sG)}, {s(sG)}, 2')
    A(f's_add_u32 {s(sG)}, {s(sG)}, {s(e.sWave)}')
    A.label(pfx + '_l')
    A(f's_mul_i32 {s(sT[0])}, {s(sG)}, 20480')
    for i in range(20):
        A(f'buffer_load_dwordx4 {v(vX+4*i,4)}, {v(vA)}, {s(sX,4)}, {s(sT[0])} offen offset:{64*i}')
    for i in range(4):
        A(f'v_mov_b32 {v(vAcc+i)}, 0')
    A('s_waitcnt vmcnt(0)')
    for i in range(80):
        A(f'v_dot2_f32_bf16 {v(vAcc+i%4)}, {v(vX+i)}, {v(vW+i)}, {v(vAcc+i%4)}')
    A('s_nop 3')
    A(f'v_add_f32 {v(vAcc)}, {v(vAcc)}, {v(vAcc+1)}')
    A(f'v_add_f32 {v(vAcc+2)}, {v(vAcc+2)}, {v(vAcc+3)}')
    A(f'v_add_f32 {v(t0)}, {v(vAcc)}, {v(vAcc+2)}')
    A(f'v_add_f32_dpp {v(t0)}, {v(t0)}, {v(t0)} quad_perm:[1,0,3,2] row_mask:0xf bank_mask:0xf')
    A(f'v_add_f32_dpp {v(t0)}, {v(t0)}, {v(t0)} quad_perm:[2,3,0,1] row_mask:0xf bank_mask:0xf')
    A(f'v_mul_f32 {v(t0)}, {f32bits(-1.4426950408889634):#x}, {v(t0)}')
    A(f'v_exp_f32 {v(t0)}, {v(t0)}')
    A(f'v_add_f32 {v(t0)}, 1.0, {v(t0)}')
    A(f'v_rcp_f32 {v(t0)}, {v(t0)}')
    A(f's_lshl_b32 {s(sT[0])}, {s(sG)}, 6')
    A(f's_add_u32 {s(sT[0])}, {s(sT[0])}, {G_OFF}')
    A(f'buffer_store_dword {v(t0)}, {v(vGa)}, {s(e.sWS,4)}, {s(sT[0])} offen sc1')
    A(f'v_mov_b32 {v(t0)}, 1')
    A(f'v_mov_b32 {v(t1)}, {FL_MISC + 128}')
    A('s_waitcnt vmcnt(0)')
    A('s_mov_b64 exec, 1')
    A(f'buffer_atomic_add {v(t0)}, {v(t1)}, {s(e.sWS,4)}, 0 offen sc1')
    A('s_mov_b64 exec, -1')
    A(f's_add_u32 {s(sG)}, {s(sG)}, 96')
    A(f's_cmp_lt_u32 {s(sG)}, 128')
    A(f's_cbranch_scc1 {pfx}_l')


def gen_fin(A, e, sTask, fail, done):
    pfx = 'L_f'
    SA = Alloc(e.sFree + 1, 102)
    sX = SA(4, 4); sOut = SA(4, 4); sP = SA(4, 4)
    sTile = SA(); sSeg = SA(); sCs = SA(); sTau = SA(); sQt = SA(); sCol = SA(); sAP = SA(4); sZ = SA(); sRow = SA(); sGo = SA()
    sFl = SA(); sRdy = SA(); sNeed = SA(); sT = [SA(), SA()]
    VA = Alloc(1, 64)
    vLA = VA(); vL4 = VA(); vXa = VA(); vGa = VA(); t0 = VA(); t1 = VA(); vG = VA()
    vP = VA(16); vZ = VA(2); vX = VA(2); vB = VA(8)
    A(f's_load_dwordx2 {s(sP,2)}, s[0:1], 0')
    A(f's_load_dwordx2 {s(sP+2,2)}, s[0:1], 112')
    A(f's_lshl_b32 {s(sT[0])}, {s(sTask)}, 2')
    A(f's_add_u32 {s(sT[0])}, {s(sT[0])}, {s(e.sWave)}')
    A(f's_mul_i32 {s(sSeg)}, {s(sT[0])}, 820')
    A(f's_lshr_b32 {s(sSeg)}, {s(sSeg)}, 16')
    A(f's_mul_i32 {s(sT[1])}, {s(sSeg)}, 80')
    A(f's_sub_u32 {s(sTile)}, {s(sT[0])}, {s(sT[1])}')
    A('s_waitcnt vmcnt(0) lgkmcnt(0)')
    A(f's_cmp_ge_u32 {s(sSeg)}, 3')
    A(f's_cbranch_scc1 {done}')
    srd(A, sX, sP, 2621440)
    srd(A, sOut, sP + 2, 2621440)
    A(f's_mul_i32 {s(sCs)}, {s(sTile)}, 6554')
    A(f's_lshr_b32 {s(sCs)}, {s(sCs)}, 16')
    A(f's_mul_i32 {s(sT[0])}, {s(sCs)}, 10')
    A(f's_sub_u32 {s(sTau)}, {s(sTile)}, {s(sT[0])}')
    A(f's_cmp_ge_u32 {s(sTau)}, 5')
    A(f's_cselect_b32 {s(sQt)}, 1, 0')
    A(f's_mul_i32 {s(sT[0])}, {s(sQt)}, 5')
    A(f's_sub_u32 {s(sT[0])}, {s(sTau)}, {s(sT[0])}')
    A(f's_mul_i32 {s(sCol)}, {s(sCs)}, 5')
    A(f's_add_u32 {s(sCol)}, {s(sCol)}, {s(sT[0])}')
    A(f'v_and_b32 {v(vL4)}, 63, v0')
    A(f'v_lshlrev_b32 {v(vLA)}, 4, {v(vL4)}')
    A(f'v_lshlrev_b32 {v(vL4)}, 2, {v(vL4)}')
    A(f'v_and_b32 {v(t0)}, 15, v0')
    A(f'v_lshlrev_b32 {v(vGa)}, 2, {v(t0)}')
    A(f'v_mul_u32_u24 {v(vXa)}, 1280, {v(t0)}')
    A(f'v_bfe_u32 {v(t0)}, v0, 4, 2')
    A(f'v_lshl_add_u32 {v(vXa)}, {v(t0)}, 3, {v(vXa)}')
    A(f's_lshl_b32 {s(sFl)}, {s(sCs)}, 7')
    A(f's_and_b32 {s(sT[0])}, {s(sTau)}, 3')
    A(f's_lshl_b32 {s(sT[0])}, {s(sT[0])}, 4')
    A(f's_add_u32 {s(sFl)}, {s(sFl)}, {s(sT[0])}')
    A(f's_add_u32 {s(sFl)}, {s(sFl)}, {FL_WO}')
    fl_place(A, e, (sFl,), sT[0])
    A(f's_mul_i32 {s(sAP)}, {s(sSeg)}, {32 * 10240}')
    A(f's_mul_i32 {s(sT[0])}, {s(sCs)}, 40960')
    A(f's_add_u32 {s(sAP)}, {s(sAP)}, {s(sT[0])}')
    A(f's_lshl_b32 {s(sT[0])}, {s(sTau)}, 10')
    A(f's_add_u32 {s(sAP)}, {s(sAP)}, {s(sT[0])}')
    A(f's_add_u32 {s(sAP)}, {s(sAP)}, {AP_OFF}')
    A(f's_lshl_b32 {s(sZ)}, {s(sCol)}, 16')
    A(f's_lshl_b32 {s(sT[0])}, {s(sSeg)}, 10')
    A(f's_add_u32 {s(sZ)}, {s(sZ)}, {s(sT[0])}')
    A(f's_lshl_b32 {s(sT[0])}, {s(sQt)}, 3')
    A(f's_add_u32 {s(sZ)}, {s(sZ)}, {s(sT[0])}')
    A(f's_add_u32 {s(sZ)}, {s(sZ)}, {Z_OFF}')
    A(f's_lshl_b32 {s(sT[0])}, {s(sSeg)}, 1')
    A(f's_add_u32 {s(sT[0])}, {s(sT[0])}, {s(sQt)}')
    A(f's_lshl_b32 {s(sGo)}, {s(sT[0])}, 6')
    A(f's_add_u32 {s(sGo)}, {s(sGo)}, {G_OFF}')
    A(f's_mul_i32 {s(sRow)}, {s(sT[0])}, 20480')
    A(f's_lshl_b32 {s(sT[0])}, {s(sCol)}, 5')
    A(f's_add_u32 {s(sRow)}, {s(sRow)}, {s(sT[0])}')
    A('s_mov_b64 exec, 1')
    A(f's_lshl_b32 {s(sT[0])}, {s(sCol)}, 2')
    A(f's_add_u32 {s(sT[0])}, {s(sT[0])}, {FL_MISC + 256}')
    wait_word(A, pfx + '_z', t0, vL4, e.sWS, s(sT[0]), 'gt', 1, e.sCnt, fail, slp=8)
    A(f's_mov_b32 {s(sT[0])}, {FL_MISC + 128}')
    A(f's_mov_b32 {s(sT[1])}, 128')
    wait_word(A, pfx + '_g', t0, vL4, e.sWS, s(sT[0]), 'gt', s(sT[1]), e.sCnt, fail, slp=8)
    A('s_mov_b64 exec, -1')
    A(f's_mov_b32 {s(sRdy)}, 0')
    e.mark(A, 6, t0, t1)
    A.label(pfx + '_l')
    A(f'buffer_load_dwordx2 {v(vZ,2)}, {v(vLA)}, {s(e.sWS,4)}, {s(sZ)} offen sc1')
    A(f'buffer_load_dwordx2 {v(vX,2)}, {v(vXa)}, {s(sX,4)}, {s(sRow)} offen')
    A(f'buffer_load_dword {v(vG)}, {v(vGa)}, {s(e.sWS,4)}, {s(sGo)} offen sc1')
    A(f's_add_u32 {s(sNeed)}, {s(sSeg)}, 1')
    cached_wait(A, pfx + '_w', e, sRdy, s(sNeed), t0, vL4, s(sFl), 4, sT[0], fail, slp=6)
    for k in range(1, 4):
        A(f's_add_u32 {s(sAP+k)}, {s(sAP)}, {10240*k}')
    for k in range(4):
        A(f'buffer_load_dwordx4 {v(vP+4*k,4)}, {v(vLA)}, {s(e.sWS,4)}, {s(sAP+k)} offen sc1')
    A('s_waitcnt vmcnt(4)')
    for i in range(2):
        A(f'v_lshlrev_b32 {v(vB+2*i)}, 16, {v(vZ+i)}')
        A(f'v_and_b32 {v(vB+2*i+1)}, 0xffff0000, {v(vZ+i)}')
        A(f'v_lshlrev_b32 {v(vB+4+2*i)}, 16, {v(vX+i)}')
        A(f'v_and_b32 {v(vB+4+2*i+1)}, 0xffff0000, {v(vX+i)}')
    A(f'v_sub_f32 {v(t1)}, 1.0, {v(vG)}')
    for r in range(4):
        A(f'v_mul_f32 {v(vB+r)}, {v(vB+r)}, {v(vB+4+r)}')
    for r in range(4):
        A(f'v_mul_f32 {v(vB+r)}, {v(vB+r)}, {v(t1)}')
    A('s_waitcnt vmcnt(0)')
    for r in range(4):
        A(f'v_add_f32 {v(vP+r)}, {v(vP+r)}, {v(vP+4+r)}')
        A(f'v_add_f32 {v(vP+8+r)}, {v(vP+8+r)}, {v(vP+12+r)}')
    for r in range(4):
        A(f'v_add_f32 {v(vP+r)}, {v(vP+r)}, {v(vP+8+r)}')
    for r in range(4):
        A(f'v_fmac_f32 {v(vB+r)}, {v(vP+r)}, {v(vG)}')
    A(f'v_cvt_pk_bf16_f32 {v(vP)}, {v(vB)}, {v(vB+1)}')
    A(f'v_cvt_pk_bf16_f32 {v(vP+1)}, {v(vB+2)}, {v(vB+3)}')
    A(f'buffer_store_dwordx2 {v(vP,2)}, {v(vXa)}, {s(sOut,4)}, {s(sRow)} offen')
    A(f's_add_u32 {s(sAP)}, {s(sAP)}, {3 * 32 * 10240}')
    A(f's_add_u32 {s(sZ)}, {s(sZ)}, 3072')
    A(f's_add_u32 {s(sGo)}, {s(sGo)}, {3 * 128}')
    A(f's_add_u32 {s(sRow)}, {s(sRow)}, {3 * 40960}')
    A(f's_add_u32 {s(sSeg)}, {s(sSeg)}, 3')
    A(f's_cmp_lt_u32 {s(sSeg)}, 64')
    A('s_waitcnt vmcnt(0)')
    A(f's_cbranch_scc1 {pfx}_l')
    A(f's_branch {done}')


def gen_post(A, e, fail='L_fail', done='L_exit'):
    sTask = e.sFree
    A.label('L_post')
    A(f's_mov_b32 {s(sTask)}, {s(e.sRole)}')
    e.mark(A, 4, 1, 2)
    gen_fin(A, e, sTask, fail, done)


def gen_aux(A, e, fail='L_fail', done='L_exit', d0=32512):
    sTask = e.sFree
    A(f's_mov_b32 {s(sTask)}, {s(e.sRole)}')
    sT = [sTask + 1, sTask + 2, sTask + 3, sTask + 4, sTask + 5]
    sA = (sTask + 7) & ~1
    sB = sA + 2
    A(f's_cmp_lg_u32 {s(e.sWave)}, 0')
    A('s_cbranch_scc1 L_noprobe')
    A(f's_cmp_eq_u32 {s(e.sRole)}, 8')
    A('s_cbranch_scc1 L_clear')
    A(f's_cmp_lg_u32 {s(e.sRole)}, 0')
    A('s_cbranch_scc1 L_noprobe')
    A('s_mov_b64 exec, 1')
    A(f's_mov_b32 {s(sT[1])}, 0x100000')
    A(f's_mov_b32 {s(sT[2])}, 0x100000')
    A(f's_mov_b32 {s(sT[4])}, 0')
    A.label('L_probe')
    for k in range(2):
        A(f'v_mov_b32 v1, {PROBE_OFF + 8192 * k}')
        A('v_mov_b32 v2, 0')
        A(f's_memtime {s(sA,2)}')
        A('s_waitcnt lgkmcnt(0)')
        A(f'buffer_atomic_add v2, v1, {s(e.sWS,4)}, 0 offen sc0 sc1')
        A('s_waitcnt vmcnt(0)')
        A(f's_memtime {s(sB,2)}')
        A('s_waitcnt lgkmcnt(0)')
        A(f's_sub_u32 {s(sT[3])}, {s(sB)}, {s(sA)}')
        A(f's_min_u32 {s(sT[1 + k])}, {s(sT[1 + k])}, {s(sT[3])}')
    A(f's_add_u32 {s(sT[4])}, {s(sT[4])}, 1')
    A(f's_cmp_lt_u32 {s(sT[4])}, 3')
    A('s_cbranch_scc1 L_probe')
    A(f's_min_u32 {s(sT[0])}, {s(sT[1])}, {s(sT[2])}')
    A(f's_max_u32 {s(sT[3])}, {s(sT[1])}, {s(sT[2])}')
    A(f's_mul_i32 {s(sT[0])}, {s(sT[0])}, 5')
    A(f's_lshl_b32 {s(sT[3])}, {s(sT[3])}, 2')
    A(f's_cmp_ge_u32 {s(sT[3])}, {s(sT[0])}')
    A('s_cbranch_scc1 L_probed')
    A(f's_cmp_lt_u32 {s(sT[4])}, 40')
    A('s_cbranch_scc1 L_probe')
    A.label('L_probed')
    if e.marks:
        A(f'v_mov_b32 v2, {s(sT[1])}'); A(f'v_mov_b32 v3, {s(sT[2])}'); A(f'v_mov_b32 v1, {DBG_GO + 4}')
        A(f'buffer_store_dwordx2 v[2:3], v1, {s(e.sDBG,4)}, 0 offen sc1')
        A(f'v_mov_b32 v2, {s(sT[4])}'); A(f'v_mov_b32 v1, {DBG_PAR + 4}')
        A(f'buffer_store_dword v2, v1, {s(e.sDBG,4)}, 0 offen sc1')
    A(f's_cmp_lt_u32 {s(sT[1])}, {s(sT[2])}')
    A(f's_cselect_b32 {s(sT[0])}, 1, 2')
    A(f'v_mov_b32 v2, {s(sT[0])}')
    A(f'v_mov_b32 v1, {DBG_PAR}')
    A('s_branch L_tell')
    A.label('L_clear')
    A('v_lshlrev_b32 v1, 4, v0')
    for i in range(4):
        A(f'v_mov_b32 v{4+i}, 0')
    for i in FL_CLEAR:
        A(f's_mov_b32 {s(sT[0])}, {FL_OFF + i}')
        A(f'buffer_store_dwordx4 v[4:7], v1, {s(e.sWS,4)}, {s(sT[0])} offen sc1')
    A('s_mov_b64 exec, 1')
    A('v_mov_b32 v2, 1')
    A(f'v_mov_b32 v1, {DBG_GO}')
    A('s_waitcnt vmcnt(0)')
    A.label('L_tell')
    A(f'buffer_store_dword v2, v1, {s(e.sDBG,4)}, 0 offen sc1')
    A('s_mov_b64 exec, -1')
    A.label('L_noprobe')
    for _ in range(d0 // 8128):
        sleep(A, 8128)
    wait_go(A, 'L_aux_go', e, 1, 2, fail, par=False)
    A.label('L_aux')
    A(f's_cmp_ge_u32 {s(sTask)}, 40')
    A('s_cbranch_scc1 L_aux_g')
    gen_conv(A, e, sTask, fail)
    A('s_waitcnt vmcnt(0) lgkmcnt(0)')
    A('s_barrier')
    e.mark(A, 5, 1, 2)
    A(f's_cmp_ge_u32 {s(sTask)}, 32')
    A(f's_cbranch_scc1 {done}')
    A(f's_add_u32 {s(sTask)}, {s(sTask)}, 32')
    A('s_branch L_aux')
    A.label('L_aux_g')
    gen_gate(A, e, sTask, fail)
    A('s_waitcnt vmcnt(0)')
    A(f's_branch {done}')
```

```python
from common import *

LQ = 124928
LK = 94208
LV = 106496
LM = 118784


def cached_wait(A, name, e, sRdy, need, vtmp, vaddr, soff, lanes, sT, fail, slp=2):
    A(f's_cmp_ge_u32 {s(sRdy)}, {need}')
    A(f's_cbranch_scc1 {name}_e')
    A(f's_mov_b64 exec, {(1 << lanes) - 1}')
    wait_word(A, name, vtmp, vaddr, e.sWS, soff, 'gt', need, e.sCnt, fail, slp=slp)
    A(f'v_readlane_b32 {s(sRdy)}, {v(vtmp)}, 0')
    for i in range(1, lanes):
        A(f'v_readlane_b32 {s(sT)}, {v(vtmp)}, {i}')
        A(f's_min_u32 {s(sRdy)}, {s(sRdy)}, {s(sT)}')
    A('s_mov_b64 exec, -1')
    A.label(name + '_e')


def gen_qa(A, e, fail='L_fail', done='L_exit', d0=8128, prof=False):
    pfx = 'L_q'
    SA = Alloc(e.sFree, 102)
    sW = SA(4, 4); sX = SA(4, 4); sP = SA(4, 4)
    sH = SA(); sSeg = SA(); sSrc = SA(); sDst = [SA(), SA()]; sK = SA(); sV = SA(); sKM = SA(); sVM = SA(); sO = SA()
    sFl = SA(); sFlKV = SA(); sFlCh = SA(); sRkv = SA(); sRch = SA(); sNeed = SA(); sKd = SA(); sMd = SA(); sScale = SA(); sEarly = SA()
    sT = [SA(), SA(), SA()]
    sMask = SA(16, 2)
    VA = Alloc(1, 256)
    vSrc = VA(10); vRd = VA(4); vLA = VA(); vL4 = VA(); vQW = VA(); vQR = VA(); vKR = VA(); vKMr = VA(); vVr = VA(); vVMr = VA(); vZ = VA(); vNeg = VA(); vFl = VA()
    vt = [VA() for _ in range(8)]
    vE = VA(4)
    vXf = VA(24); vAcc = VA(24); vPk = VA(12)
    vQf = VA(24); vKf = VA(48); vKm = VA(24); vVf = VA(24); vVm = VA(14); vPx = VA(4); vPm = VA(4)
    vS = vXf
    vO = vAcc
    t0, t1 = vt[0], vt[1]

    def wreg(tl, t, hf):
        return a((tl * 20 + t) * 4 + 2 * hf, 2)

    def wfrag(tl, t):
        return a((tl * 20 + t) * 4, 4)
    A(f's_mov_b32 {s(sH)}, {s(e.sRole)}')
    sleep(A, d0)
    A(f's_load_dwordx2 {s(sP,2)}, s[0:1], 16')
    A(f's_load_dwordx2 {s(sP+2,2)}, s[0:1], 0')
    A('s_waitcnt lgkmcnt(0)')
    srd(A, sW, sP, 7864320)
    srd(A, sX, sP + 2, 2621440)
    stage_w192(A, e, sW, sH, sT, vt, wreg, pfx)
    x_consts(A, e, vSrc, vRd, vt[0], vt[1], sT[0])
    A(f's_mul_i32 {s(sSrc)}, {s(e.sWave)}, 10240')
    A(f's_mov_b32 {s(sDst[0])}, {s(sSrc)}')
    A(f's_add_u32 {s(sDst[1])}, {s(sSrc)}, 40960')
    for g_ in x_dma(vSrc, sX, sSrc, sDst[0]):
        for x in g_:
            A(x)
    A(f's_add_u32 {s(sSrc)}, {s(sSrc)}, 40960')
    A(f'v_and_b32 {v(vL4)}, 63, v0')
    A(f'v_lshlrev_b32 {v(vLA)}, 4, {v(vL4)}')
    A(f'v_lshlrev_b32 {v(vL4)}, 2, {v(vL4)}')
    A(f'v_mov_b32 {v(vZ)}, 0')
    A(f'v_mov_b32 {v(vNeg)}, 0xff7fffff')
    for i in range(4):
        A(f'v_mov_b32 {v(vE+i)}, 0x3f803f80')
        A(f'v_mov_b32 {v(vPm+i)}, 0')
    for i in range(14):
        A(f'v_mov_b32 {v(vVm+i)}, 0')
    A(f's_mul_i32 {s(sT[0])}, {s(e.sWave)}, 3072')
    A(f's_add_u32 {s(sKd)}, {s(sT[0])}, {LK}')
    A(f's_add_u32 {s(sT[1])}, {s(sT[0])}, {LQ}')
    A(f'v_add_u32 {v(vQW)}, {s(sT[1])}, {v(vLA)}')
    A(f's_mul_i32 {s(sT[1])}, {s(sH)}, {SEG_H}')
    A(f's_add_u32 {s(sK)}, {s(sT[1])}, {s(sT[0])}')
    A(f's_add_u32 {s(sK)}, {s(sK)}, {KX_OFF}')
    A(f's_lshr_b32 {s(sT[0])}, {s(e.sWave)}, 1')
    A(f's_and_b32 {s(sT[2])}, {s(e.sWave)}, 1')
    A(f's_add_u32 {s(sV)}, {s(sK)}, {VX_OFF - KX_OFF}')
    A(f's_mul_i32 {s(sMd)}, {s(sT[0])}, 6144')
    A(f's_add_u32 {s(sMd)}, {s(sMd)}, {LV}')
    A(f'v_add_u32 {v(vVr)}, {s(sMd)}, {v(vLA)}')
    A(f's_mul_i32 {s(sMd)}, {s(sT[0])}, 1536')
    A(f's_add_u32 {s(sMd)}, {s(sMd)}, {LM + 3072}')
    A(f'v_add_u32 {v(vVMr)}, {s(sMd)}, {v(vL4)}')
    A(f's_mul_i32 {s(sO)}, {s(sT[0])}, 3072')
    A(f's_add_u32 {s(sO)}, {s(sO)}, {s(sT[1])}')
    A(f's_mul_i32 {s(sKM)}, {s(sT[2])}, 6144')
    A(f's_add_u32 {s(sO)}, {s(sO)}, {s(sKM)}')
    A(f's_add_u32 {s(sO)}, {s(sO)}, {O_OFF}')
    A(f's_mul_i32 {s(sKM)}, {s(sH)}, 3072')
    A(f's_min_u32 {s(sMd)}, {s(e.sWave)}, 2')
    A(f's_lshl_b32 {s(sMd)}, {s(sMd)}, 10')
    A(f's_add_u32 {s(sKM)}, {s(sKM)}, {s(sMd)}')
    A(f's_add_u32 {s(sMd)}, {s(sMd)}, {LM}')
    A(f's_add_u32 {s(sVM)}, {s(sKM)}, {VMO_OFF}')
    A(f's_add_u32 {s(sKM)}, {s(sKM)}, {KM_OFF}')
    A(f's_lshl_b32 {s(sT[1])}, {s(sT[2])}, 3')
    A(f's_add_u32 {s(sT[1])}, {s(sT[1])}, {LQ}')
    A(f'v_add_u32 {v(vQR)}, {s(sT[1])}, {v(vLA)}')
    A(f'v_add_u32 {v(vKR)}, {LK}, {v(vLA)}')
    A(f'v_bfe_u32 {v(t0)}, v0, 2, 2')
    A(f'v_and_b32 {v(t1)}, 1, v0')
    A(f'v_lshl_add_u32 {v(t0)}, {v(t0)}, 1, {v(t1)}')
    A(f'v_lshlrev_b32 {v(t0)}, 4, {v(t0)}')
    A(f'v_bfe_u32 {v(t1)}, v0, 4, 2')
    A(f'v_lshl_add_u32 {v(t0)}, {v(t1)}, 7, {v(t0)}')
    A(f'v_add_u32 {v(vKMr)}, {LM}, {v(t0)}')
    A(f's_lshl_b32 {s(sT[1])}, {s(sT[2])}, 4')
    A(f'v_and_b32 {v(t0)}, 15, v0')
    A(f'v_add_u32 {v(t0)}, {s(sT[1])}, {v(t0)}')
    A(f'v_lshlrev_b32 {v(t1)}, 2, {v(t1)}')
    for kt in range(2):
        for r in range(4):
            A(f'v_add_u32 {v(vt[2])}, {16*kt + r}, {v(t1)}')
            A(f'v_cmp_le_u32 {s(sMask + 2*(4*kt+r), 2)}, {v(vt[2])}, {v(t0)}')
    A(f's_lshl_b32 {s(sT[0])}, {s(sH)}, 7')
    A(f's_lshl_b32 {s(sFl)}, {s(e.sWave)}, 2')
    A(f's_add_u32 {s(sFl)}, {s(sFl)}, {s(sT[0])}')
    A(f's_add_u32 {s(sFl)}, {s(sFl)}, {FL_QA}')
    A(f's_add_u32 {s(sFlKV)}, {s(sT[0])}, {FL_KV}')
    A(f's_add_u32 {s(sFlCh)}, {s(sT[0])}, {FL_CH}')
    A(f's_mov_b32 {s(sRkv)}, 0')
    A(f's_mov_b32 {s(sRch)}, 0')
    A(f's_mov_b32 {s(sScale)}, {f32bits(SCALE_LOG2E):#x}')
    e.mark(A, 2, vt[0], vt[1])
    wait_go(A, pfx + '_go', e, vt[0], vt[1], fail)
    fl_place(A, e, (sFl, sFlKV, sFlCh), sT[0])
    e.mark(A, 3, vt[0], vt[1])
    if e.marks:
        A('s_waitcnt vmcnt(0)')
    A(f's_mov_b32 {s(sSeg)}, 0')

    def st(i):
        if prof:
            A(f's_memtime s[{76+2*i}:{77+2*i}]')

    def publish():
        A(f'v_mov_b32 {v(t0)}, {s(sSeg)}')
        A('s_mov_b64 exec, 1')
        A(f'buffer_store_dword {v(t0)}, {v(vZ)}, {s(e.sWS,4)}, {s(sFl)} offen sc1')
        A('s_mov_b64 exec, -1')

    def ld_mem():
        A(f's_mov_b32 m0, {s(sMd)}')
        A('s_nop 0')
        A(f'buffer_load_dwordx4 {v(vLA)}, {s(e.sWS,4)}, {s(sKM)} offen sc1 lds')
        A(f's_add_u32 m0, {s(sMd)}, 3072')
        A(f's_add_u32 {s(sKM)}, {s(sKM)}, {32 * 3072}')
        A(f'buffer_load_dwordx4 {v(vLA)}, {s(e.sWS,4)}, {s(sVM)} offen sc1 lds')
        A(f's_add_u32 {s(sVM)}, {s(sVM)}, {32 * 3072}')

    def gemm(b, tag, mul, att):
        A('s_barrier')
        st(0)
        buf = 40960 * b
        dma = x_dma(vSrc, sX, sSrc, sDst[b ^ 1])
        for t in range(2 if mul else 0):
            for xt in range(2):
                A(x_read(vXf + 8 * t + 4 * xt, vRd, t, xt, buf))
        if att:
            A(f's_add_u32 {s(sNeed)}, {s(sSeg)}, 1')
            cached_wait(A, f'{pfx}_kv{tag}', e, sRkv, s(sNeed), t0, vL4, s(sFlKV), 8, sT[0], fail)
        work = [[f'buffer_load_dword {v(vFl)}, {v(vL4)}, {s(e.sWS,4)}, {s(sFlCh)} offen sc1']]
        for src, dst in ((sK, 0), (sV, LV - LK)):
            for i in range(3):
                work.append(([f's_add_u32 m0, {s(sKd)}, {dst}', 's_nop 0'] if i == 0 else []) +
                            [f'buffer_load_dwordx4 {v(vLA)}, {s(e.sWS,4)}, {s(src)} offen offset:{1024*i} sc1 lds'])
        work = (work if att else []) + (dma if mul else [])
        if not mul:
            for g_ in work:
                for x in g_:
                    A(x)
            A('s_waitcnt vmcnt(7)')
            publish()
            A(f's_mov_b32 {s(sEarly)}, 0')
        st(1)
        for t in range(20 if mul else 0):
            k = t % 3
            if t == 8 and att:
                st(2)
                A(f's_waitcnt vmcnt({16 - len(work)})')
                publish()
                for i in range(3):
                    A(f'v_readlane_b32 {s(sT[i])}, {v(vFl)}, {i}')
                A(f's_min_u32 {s(sT[0])}, {s(sT[0])}, {s(sT[1])}')
                A(f's_min_u32 {s(sRch)}, {s(sT[0])}, {s(sT[2])}')
                A(f's_cmp_ge_u32 {s(sRch)}, {s(sNeed)}')
                A(f's_cselect_b32 {s(sEarly)}, 1, 0')
                A(f's_cbranch_scc0 {pfx}_late{tag}')
                ld_mem()
                A.label(f'{pfx}_late{tag}')
                st(3)
            if t + 2 < 20:
                for xt in range(2):
                    A(x_read(vXf + 8 * ((t + 2) % 3) + 4 * xt, vRd, t + 2, xt, buf))
            A(f's_waitcnt lgkmcnt({min(4, 2 * (19 - t))})')
            for tl in range(3):
                for xt in range(2):
                    acc = v(vAcc + 8 * tl + 4 * xt, 4)
                    A(f'v_mfma_f32_16x16x32_bf16 {acc}, {wfrag(tl, t)}, {v(vXf + 8*k + 4*xt, 4)}, {acc if t else 0}')
                if work and (tl == 0 or (tl == 2 and t % 4 == 0)):
                    for x in work.pop(0):
                        A(x)
        assert not work or not mul
        st(4)
        A(f's_add_u32 {s(sSrc)}, {s(sSrc)}, 40960')
        if att:
            A(f's_add_u32 {s(sK)}, {s(sK)}, {SEG_ALL}')
            A(f's_add_u32 {s(sV)}, {s(sV)}, {SEG_ALL}')
        for tl in range(3 if mul else 0):
            for q in range(4):
                A(f'v_cvt_pk_bf16_f32 {v(vPk+4*tl+q)}, {v(vAcc+8*tl+2*q)}, {v(vAcc+8*tl+2*q+1)}')
            A(f'ds_write_b128 {v(vQW)}, {v(vPk+4*tl,4)} offset:{12288*b + 1024*tl}')
        st(5)
        A('s_waitcnt vmcnt(0) lgkmcnt(0)')
        st(6)
        A('s_barrier')
        st(7)

    def attention(b, tag):
        for tl in range(12):
            A(f'ds_read_b64 {v(vQf+2*tl,2)}, {v(vQR)} offset:{12288*(b^1) + 1024*tl}')
        A(f's_cmp_lg_u32 {s(sEarly)}, 0')
        A(f's_cbranch_scc1 {pfx}_have{tag}')
        cached_wait(A, f'{pfx}_ch{tag}', e, sRch, s(sNeed), t0, vL4, s(sFlCh), 3, sT[0], fail)
        ld_mem()
        A.label(f'{pfx}_have{tag}')
        A('s_waitcnt lgkmcnt(1)')
        for kt in range(2):
            for tl in range(12):
                A(f'ds_read_b64 {v(vKf+24*kt+2*tl,2)}, {v(vKR)} offset:{1024*tl + 8*kt}')
                if kt == 1 and tl % 2 == 1:
                    A('s_waitcnt lgkmcnt(12)')
                    ks = tl // 2
                    A(f'v_mfma_f32_16x16x32_bf16 {v(vS+4,4)}, {v(vKf+4*ks,4)}, {v(vQf+4*ks,4)}, {v(vS+4,4) if ks else 0}')
        A('s_waitcnt vmcnt(0)')
        A('s_barrier')
        for ks in range(6):
            A(f's_waitcnt lgkmcnt({10 - ks})')
            A(f'v_mfma_f32_16x16x32_bf16 {v(vS+8,4)}, {v(vKf+24+4*ks,4)}, {v(vQf+4*ks,4)}, {v(vS+8,4) if ks else 0}')
            A(f'ds_read_b128 {v(vKm+4*ks,4)}, {v(vKMr)} offset:{512*ks}')
        for ks in range(6):
            A(f's_waitcnt lgkmcnt({5 + ks})')
            A(f'v_mfma_f32_16x16x32_bf16 {v(vS,4)}, {v(vKm+4*ks,4)}, {v(vQf+4*ks,4)}, {v(vS,4) if ks else 0}')
            A(f'ds_read_b128 {v(vVf+4*ks,4)}, {v(vVr)} offset:{1024*ks}')
            A(f'ds_read_b32 {v(vVm+2*ks)}, {v(vVMr)} offset:{256*ks}')
        st(8)
        for i in range(8):
            A(f'v_cndmask_b32 {v(vS+4+i)}, {v(vNeg)}, {v(vS+4+i)}, {s(sMask+2*i,2)}')
        A(f'v_max3_f32 {v(t0)}, {v(vS+4)}, {v(vS+5)}, {v(vS+6)}')
        A(f'v_max3_f32 {v(t1)}, {v(vS+7)}, {v(vS+8)}, {v(vS+9)}')
        A(f'v_max3_f32 {v(t0)}, {v(t0)}, {v(vS+10)}, {v(vS+11)}')
        A(f'v_max3_f32 {v(t1)}, {v(t1)}, {v(vS)}, {v(vS+1)}')
        A(f'v_max_f32 {v(t0)}, {v(t0)}, {v(t1)}')
        for sw in (16, 32):
            A(f'v_mov_b32 {v(t1)}, {v(t0)}')
            A(f'v_permlane{sw}_swap_b32 {v(t0)}, {v(t1)}')
            A(f'v_max_f32 {v(t0)}, {v(t0)}, {v(t1)}')
        A(f'v_mul_f32 {v(t0)}, {s(sScale)}, {v(t0)}')
        live = [vS, vS + 1] + list(range(vS + 4, vS + 12))
        for r in live:
            A(f'v_fma_f32 {v(r)}, {v(r)}, {s(sScale)}, -{v(t0)}')
        for r in live:
            A(f'v_exp_f32 {v(r)}, {v(r)}')
        for q in range(4):
            A(f'v_cvt_pk_bf16_f32 {v(vPx+q)}, {v(vS+4+2*q)}, {v(vS+5+2*q)}')
        A(f'v_cvt_pk_bf16_f32 {v(vPm)}, {v(vS)}, {v(vS+1)}')
        st(9)
        vL = vS + 12
        A(f'v_mfma_f32_16x16x32_bf16 {v(vL,4)}, {v(vE,4)}, {v(vPx,4)}, 0')
        A(f'v_mfma_f32_16x16x32_bf16 {v(vL,4)}, {v(vE,4)}, {v(vPm,4)}, {v(vL,4)}')
        A('s_waitcnt lgkmcnt(0)')
        for u in range(6):
            A(f'v_mfma_f32_16x16x32_bf16 {v(vO+4*u,4)}, {v(vVf+4*u,4)}, {v(vPx,4)}, 0')
        for u in range(6):
            A(f'v_mfma_f32_16x16x32_bf16 {v(vO+4*u,4)}, {v(vVm+2*u,4)}, {v(vPm,4)}, {v(vO+4*u,4)}')
        st(10)
        A(f'v_rcp_f32 {v(t0)}, {v(vL)}')
        for ks in range(3):
            for i in range(8):
                A(f'v_mul_f32 {v(vO+8*ks+i)}, {v(vO+8*ks+i)}, {v(t0)}')
            for q in range(4):
                A(f'v_cvt_pk_bf16_f32 {v(vPk+4*ks+q)}, {v(vO+8*ks+2*q)}, {v(vO+8*ks+2*q+1)}')
            A(f'buffer_store_dwordx4 {v(vPk+4*ks,4)}, {v(vLA)}, {s(e.sWS,4)}, {s(sO)} offen offset:{1024*ks} sc1')
        st(11)
        if prof and tag == 1:
            A(f's_cmp_eq_u32 {s(sSeg)}, 40')
            A('s_cbranch_scc0 L_q_np')
            A('s_waitcnt lgkmcnt(0)')
            A(f's_lshl_b32 {s(sT[0])}, {s(e.sRole)}, 2')
            A(f's_add_u32 {s(sT[0])}, {s(sT[0])}, {s(e.sWave)}')
            A(f's_lshl_b32 {s(sT[0])}, {s(sT[0])}, 6')
            A(f's_add_u32 {s(sT[0])}, {s(sT[0])}, {MARK_OFF + 0x10000}')
            for i in range(12):
                A(f'v_mov_b32 {v(t0)}, s{76+2*i}')
                A(f'buffer_store_dword {v(t0)}, {v(vZ)}, {s(e.sWS,4)}, {s(sT[0])} offen offset:{4*i}')
            A('s_waitcnt vmcnt(0)')
            A.label('L_q_np')
        A(f's_add_u32 {s(sO)}, {s(sO)}, {SEG_ALL}')
        A(f's_add_u32 {s(sSeg)}, {s(sSeg)}, 1')

    gemm(0, 'p', True, False)
    A.label(pfx + '_loop')
    gemm(1, 1, True, True)
    attention(1, 1)
    A(f's_cmp_ge_u32 {s(sSeg)}, 63')
    A(f's_cbranch_scc1 {pfx}_last')
    gemm(0, 0, True, True)
    attention(0, 0)
    A(f's_branch {pfx}_loop')
    A.label(pfx + '_last')
    gemm(0, 'l', False, True)
    attention(0, 'l')
    A('s_waitcnt vmcnt(0)')
    publish()
    A('s_waitcnt vmcnt(0)')
    A(f's_branch {done}')
```

```python
from common import *
from role_qa import cached_wait


def gen_wo(A, e, fail='L_fail', done='L_exit', d0=8128):
    pfx = 'L_o'
    SA = Alloc(e.sFree, 102)
    sW = SA(4, 4); sP = SA(2, 2)
    sKq = SA(); sCs = SA(); sSeg = SA(); sO = SA(4); sAP = SA(); sFl = SA(); sFlQ = SA(); sRdy = SA(); sNeed = SA(); sPre = SA(); sO4 = SA(4)
    sT = [SA(), SA(), SA()]
    VA = Alloc(1, 256)
    vLA = VA(); vZ = VA(); vQa = VA(); vRW = VA(); vRR = VA(); vSt2 = VA(); vFl = VA()
    vt = VA(10); vt = list(range(vt, vt + 10))
    vB = VA(96); vAcc = VA(40); vR = VA(48)
    t0, t1 = vt[0], vt[1]

    def wfrag(ct, ks):
        return a((ct * 12 + ks) * 4, 4)
    A(f's_lshr_b32 {s(sKq)}, {s(e.sRole)}, 3')
    A(f's_and_b32 {s(sCs)}, {s(e.sRole)}, 7')
    sleep(A, d0)
    A(f's_load_dwordx2 {s(sP,2)}, s[0:1], 40')
    A('s_waitcnt lgkmcnt(0)')
    srd(A, sW, sP, 7864320)
    A(f'v_and_b32 {v(vLA)}, 63, v0')
    vSrc = vt[2]; vRd = vt[3:9]
    A(f'v_mul_u32_u24 {v(t0)}, 6554, {v(vLA)}')
    A(f'v_lshrrev_b32 {v(t0)}, 16, {v(t0)}')
    A(f'v_mul_u32_u24 {v(t1)}, 10, {v(t0)}')
    A(f'v_sub_u32 {v(t1)}, {v(vLA)}, {v(t1)}')
    A(f'v_mul_u32_u24 {v(t0)}, 1280, {v(t0)}')
    A(f'v_lshl_add_u32 {v(t0)}, {v(t1)}, 4, {v(t0)}')
    A(f'v_cmp_gt_u32 vcc, 60, {v(vLA)}')
    A(f'v_mov_b32 {v(t1)}, {OOB}')
    A(f'v_cndmask_b32 {v(vSrc)}, {v(t1)}, {v(t0)}, vcc')
    A(f's_lshl_b32 {s(sT[2])}, {s(e.sWave)}, 15')
    for k in range(6):
        A(f'v_bfe_u32 {v(t0)}, v0, 2, 4')
        A(f'v_add_u32 {v(t0)}, {16*k}, {v(t0)}')
        A(f'v_mul_u32_u24 {v(t1)}, 10923, {v(t0)}')
        A(f'v_lshrrev_b32 {v(t1)}, 16, {v(t1)}')
        A(f'v_mul_u32_u24 {v(t0)}, 160, {v(t0)}')
        A(f'v_lshl_add_u32 {v(t0)}, {v(t1)}, 6, {v(t0)}')
        A(f'v_and_b32 {v(t1)}, 3, v0')
        A(f'v_lshl_add_u32 {v(t0)}, {v(t1)}, 3, {v(t0)}')
        A(f'v_add_u32 {v(vRd[k])}, {s(sT[2])}, {v(t0)}')
    A(f'v_lshlrev_b32 {v(vLA)}, 4, {v(vLA)}')
    A(f's_lshl_b32 {s(sT[0])}, {s(sKq)}, 2')
    A(f's_add_u32 {s(sT[0])}, {s(sT[0])}, {s(e.sWave)}')
    A(f's_mul_i32 {s(sO)}, {s(sT[0])}, {2 * SEG_H}')
    A(f's_lshl_b32 {s(sFlQ)}, {s(sT[0])}, 8')
    A(f's_mul_i32 {s(sT[0])}, {s(sT[0])}, {384 * 1280}')
    A(f's_mul_i32 {s(sT[1])}, {s(sCs)}, 160')
    A(f's_add_u32 {s(sT[0])}, {s(sT[0])}, {s(sT[1])}')

    def issue(p):
        for i in range(16):
            A(f's_add_u32 m0, {s(sT[2])}, {(p & 1) * 16384 + 1024 * i}')
            A('s_nop 0')
            A(f'buffer_load_dwordx4 {v(vSrc)}, {s(sW,4)}, {s(sT[0])} offen lds')
            A(f's_add_u32 {s(sT[0])}, {s(sT[0])}, {6 * 1280}')
    issue(0)
    issue(1)
    for p in range(4):
        A(f's_waitcnt vmcnt({16 if p < 3 else 0})')
        for k in range(6):
            for ct in range(5):
                A(f'ds_read_b64_tr_b16 {a((ct*12 + 3*p + k//2)*4 + 2*(k&1), 2)}, {v(vRd[k])} offset:{(p & 1)*16384 + 32*ct}')
            A('s_waitcnt lgkmcnt(5)')
        A('s_waitcnt lgkmcnt(0)')
        if p + 2 < 4:
            issue(p + 2)
    A(f's_add_u32 {s(sO)}, {s(sO)}, {O_OFF}')
    A(f's_add_u32 {s(sFlQ)}, {s(sFlQ)}, {FL_QA}')
    A(f'v_bfe_u32 {v(t0)}, v0, 2, 1')
    A(f'v_and_b32 {v(t1)}, 3, v0')
    A(f'v_lshlrev_b32 {v(t1)}, 2, {v(t1)}')
    A(f'v_lshl_add_u32 {v(vQa)}, {v(t0)}, 7, {v(t1)}')
    A(f'v_mov_b32 {v(vZ)}, 0')
    A(f's_lshl_b32 {s(sAP)}, {s(sCs)}, 2')
    A(f's_add_u32 {s(sAP)}, {s(sAP)}, {s(sKq)}')
    A(f's_mul_i32 {s(sAP)}, {s(sAP)}, 10240')
    A(f's_lshl_b32 {s(sT[0])}, {s(e.sWave)}, 10')
    A(f's_add_u32 {s(sAP)}, {s(sAP)}, {s(sT[0])}')
    A(f's_add_u32 {s(sAP)}, {s(sAP)}, {AP_OFF}')
    A(f'v_add_u32 {v(vRR)}, {s(sT[0])}, {v(vLA)}')
    A(f's_mul_i32 {s(sT[0])}, {s(e.sWave)}, 10240')
    A(f'v_add_u32 {v(vRW)}, {s(sT[0])}, {v(vLA)}')
    A(f'v_add_u32 {v(t0)}, 8192, {v(vLA)}')
    A(f'v_mov_b32 {v(t1)}, {OOB}')
    A(f's_cmp_lt_u32 {s(e.sWave)}, 2')
    A('s_cselect_b64 vcc, -1, 0')
    A(f'v_cndmask_b32 {v(vSt2)}, {v(t1)}, {v(t0)}, vcc')
    A(f's_lshl_b32 {s(sFl)}, {s(sCs)}, 7')
    A(f's_lshl_b32 {s(sT[0])}, {s(e.sWave)}, 4')
    A(f's_add_u32 {s(sFl)}, {s(sFl)}, {s(sT[0])}')
    A(f's_lshl_b32 {s(sT[0])}, {s(sKq)}, 2')
    A(f's_add_u32 {s(sFl)}, {s(sFl)}, {s(sT[0])}')
    A(f's_add_u32 {s(sFl)}, {s(sFl)}, {FL_WO}')
    A(f's_mov_b32 {s(sRdy)}, 0')
    e.mark(A, 2, vt[0], vt[1])
    wait_go(A, pfx + '_go', e, t0, t1, fail)
    fl_place(A, e, (sFl, sFlQ), sT[0])
    e.mark(A, 3, vt[0], vt[1])
    if e.marks:
        A('s_waitcnt vmcnt(0)')
    A('s_barrier')
    A(f's_mov_b32 {s(sSeg)}, 0')

    def publish():
        A(f'v_mov_b32 {v(t0)}, {s(sSeg)}')
        A('s_mov_b64 exec, 1')
        A(f'buffer_store_dword {v(t0)}, {v(vZ)}, {s(e.sWS,4)}, {s(sFl)} offen sc1')
        A('s_mov_b64 exec, -1')

    order = [(hh, ks, qt) for hh in range(2) for ks in range(6) for qt in range(2)]

    def bases():
        for i in range(4):
            if i:
                A(f's_add_u32 {s(sO+i)}, {s(sO)}, {6144 * i}')
            A(f's_add_u32 {s(sO4+i)}, {s(sO)}, {6144 * i + 4096}')

    def load(i):
        hh, ks, qt = order[i]
        base = (sO if ks < 4 else sO4) + 2 * hh + qt
        A(f'buffer_load_dwordx4 {v(vB+4*i,4)}, {v(vLA)}, {s(e.sWS,4)}, {s(base)} offen offset:{1024*(ks&3)} sc1')

    def mf(i):
        hh, ks, qt = order[i]
        for ct in range(5):
            acc = v(vAcc + 20 * qt + 4 * ct, 4)
            A(f'v_mfma_f32_16x16x32_bf16 {acc}, {wfrag(ct, 6*hh+ks)}, {v(vB+4*i,4)}, {acc if i > 1 else 0}')
    A(f's_mov_b32 {s(sPre)}, 0')
    bases()
    for b in range(2):
        A.label(f'{pfx}_seg{b}')
        A(f's_add_u32 {s(sNeed)}, {s(sSeg)}, 1')
        A(f's_cmp_lg_u32 {s(sPre)}, 0')
        A(f's_cbranch_scc1 {pfx}_pre{b}')
        A('s_waitcnt vmcnt(0)')
        publish()
        cached_wait(A, f'{pfx}_qa{b}', e, sRdy, s(sNeed), t0, vQa, s(sFlQ), 8, sT[0], fail)
        for i in range(24):
            load(i)
        A(f's_add_u32 {s(sO)}, {s(sO)}, {SEG_ALL}')
        bases()
        A(f's_cmp_gt_u32 {s(sRdy)}, {s(sNeed)}')
        A(f's_cbranch_scc0 {pfx}_plain{b}')
        A('s_waitcnt vmcnt(0)')
        A(f's_branch {pfx}_roll{b}')
        A.label(f'{pfx}_pre{b}')
        A('s_waitcnt vmcnt(3)')
        A(f'v_readlane_b32 {s(sRdy)}, {v(vFl)}, 0')
        for i in range(1, 8):
            A(f'v_readlane_b32 {s(sT[0])}, {v(vFl)}, {i}')
            A(f's_min_u32 {s(sRdy)}, {s(sRdy)}, {s(sT[0])}')
        A(f's_cmp_gt_u32 {s(sRdy)}, {s(sNeed)}')
        A(f's_cbranch_scc1 {pfx}_roll{b}')
        A(f's_mov_b32 {s(sPre)}, 0')
        for i in range(24):
            mf(i)
            if i == 11:
                A('s_waitcnt vmcnt(0)')
                publish()
        A(f's_branch {pfx}_red{b}')
        A.label(f'{pfx}_plain{b}')
        for i in range(24):
            A(f's_waitcnt vmcnt({23 - i})')
            mf(i)
        A(f's_branch {pfx}_red{b}')
        A.label(f'{pfx}_roll{b}')
        A(f's_mov_b32 {s(sPre)}, 1')
        for i in range(24):
            mf(i)
            load(i)
            if i == 11:
                A('s_waitcnt vmcnt(12)')
                publish()
        A(f'buffer_load_dword {v(vFl)}, {v(vQa)}, {s(e.sWS,4)}, {s(sFlQ)} offen sc1')
        A(f's_add_u32 {s(sO)}, {s(sO)}, {SEG_ALL}')
        bases()
        A.label(f'{pfx}_red{b}')
        lb = 40960 * b
        for tl in range(10):
            A(f'ds_write_b128 {v(vRW)}, {v(vAcc+4*tl,4)} offset:{lb + 1024*tl}')
        A('s_waitcnt lgkmcnt(0)')
        A('s_barrier')
        A(f'v_add_u32 {v(t1)}, {lb}, {v(vRR)}')
        for k in range(3):
            for src in range(4):
                A(f'ds_read_b128 {v(vR+16*k+4*src,4)}, {v(t1)} offset:{10240*src + 4096*k}')
        A(f's_add_u32 {s(sT[0])}, {s(sAP)}, 4096')
        for k in range(3):
            A(f's_waitcnt lgkmcnt({8 - 4*k})')
            r = vR + 16 * k
            for i in (0, 2):
                A(f'v_pk_add_f32 {v(r+i,2)}, {v(r+i,2)}, {v(r+4+i,2)}')
                A(f'v_pk_add_f32 {v(r+8+i,2)}, {v(r+8+i,2)}, {v(r+12+i,2)}')
            for i in (0, 2):
                A(f'v_pk_add_f32 {v(r+i,2)}, {v(r+i,2)}, {v(r+8+i,2)}')
            A(f'buffer_store_dwordx4 {v(r,4)}, {v(vLA if k < 2 else vSt2)}, {s(e.sWS,4)}, {s(sT[0] if k == 1 else sAP)} offen sc1')
        A(f's_add_u32 {s(sAP)}, {s(sAP)}, {32 * 10240}')
        A(f's_add_u32 {s(sSeg)}, {s(sSeg)}, 1')
        if b == 1:
            A(f's_cmp_lt_u32 {s(sSeg)}, 64')
            A(f's_cbranch_scc1 {pfx}_seg0')
    A('s_waitcnt vmcnt(0)')
    publish()
    A('s_waitcnt vmcnt(0)')
    A(f's_branch {done}')
```

```python
import sys, os
from common import *
import role_chain, role_kv, role_qa, role_wo, role_post

NAME = 'gated_mix__memory_aug_recurrent_mem_tr__ssm_conv_h3__prompt_kernel'
LDS = 163840


def counts(A, name, e, vt, va, sdst, scnt, fail):
    A(f'v_and_b32 {v(va)}, 3, v0')
    A(f'v_lshlrev_b32 {v(va)}, 6, {v(va)}')
    A(f'v_and_b32 {v(vt)}, 12, v0')
    A(f'v_add_u32 {v(va)}, {v(va)}, {v(vt)}')
    A(f's_mov_b32 {s(scnt)}, 0')
    A.label(name)
    A(f'buffer_load_dword {v(vt)}, {v(va)}, {s(e.sDBG,4)}, 0 offen sc1')
    A('s_waitcnt vmcnt(0)')
    for i in range(9):
        A(f'v_readlane_b32 {s(sdst+i)}, {v(vt)}, {i}')
    A(f's_mov_b32 {s(sdst+9)}, {s(sdst)}')
    for i in range(1, 9):
        A(f's_add_u32 {s(sdst+9)}, {s(sdst+9)}, {s(sdst+i)}')
    A(f's_cmp_ge_u32 {s(sdst+9)}, 256')
    A(f's_cbranch_scc1 {name}_ok')
    A('s_sleep 4')
    A(f's_add_u32 {s(scnt)}, {s(scnt)}, 1')
    A(f's_cmp_lt_u32 {s(scnt)}, 0x40000')
    A(f's_cbranch_scc1 {name}')
    A(f's_branch {fail}')
    A.label(name + '_ok')


def body(chain_kw={}, fake_xcc=None, marks=False, qa_kw={}, wo_kw={}, kv_kw={}, aux_kw={}):
    A = Asm()
    e = Env()
    e.marks = marks
    SC = 90 if not chain_kw.get('cyc') else 24

    def start(A, sSlow, vt, va, fail):
        A(f'v_and_b32 {v(va)}, 3, v0')
        A(f'v_lshlrev_b32 {v(va)}, 6, {v(va)}')
        A(f'v_and_b32 {v(vt)}, 12, v0')
        A(f'v_add_u32 {v(va)}, {v(va)}, {v(vt)}')
        for lane, addr in ((9, DBG_PAR), (10, DBG_ARR), (11, DBG_ARR + 4), (12, DBG_GO)):
            A(f's_mov_b32 {s(SC)}, {addr}')
            A(f'v_writelane_b32 {v(va)}, {s(SC)}, {lane}')
        A(f's_mov_b32 {s(e.sCnt)}, 0')
        A.label('L_ch_st')
        A(f'buffer_load_dword {v(vt)}, {v(va)}, {s(e.sDBG,4)}, 0 offen sc1')
        A('s_waitcnt vmcnt(0)')
        for i in range(9):
            A(f'v_readlane_b32 {s(SC+i)}, {v(vt)}, {i}')
        A(f'v_readlane_b32 {s(e.sPar)}, {v(vt)}, 9')
        A(f's_min_u32 {s(sSlow)}, {s(SC)}, {s(SC+1)}')
        A(f's_min_u32 {s(sSlow)}, {s(sSlow)}, {s(SC+2)}')
        A(f's_min_u32 {s(sSlow)}, {s(sSlow)}, {s(SC+3)}')
        for i in range(1, 9):
            A(f's_add_u32 {s(SC)}, {s(SC)}, {s(SC+i)}')
        A(f'v_readlane_b32 {s(SC+1)}, {v(vt)}, 10')
        A(f'v_readlane_b32 {s(SC+2)}, {v(vt)}, 11')
        A(f'v_readlane_b32 {s(SC+3)}, {v(vt)}, 12')
        A(f's_cmp_eq_u32 {s(SC+3)}, 0')
        A('s_cbranch_scc1 L_ch_st_no')
        A(f's_cmp_lt_u32 {s(SC)}, 256')
        A('s_cbranch_scc1 L_ch_st_no')
        A(f's_cmp_eq_u32 {s(e.sPar)}, 0')
        A('s_cbranch_scc1 L_ch_st_no')
        A(f's_cmp_lt_u32 {s(SC+1)}, 96')
        A('s_cbranch_scc1 L_ch_st_no')
        A(f's_cmp_ge_u32 {s(SC+2)}, 32')
        A('s_cbranch_scc1 L_ch_st_ok')
        A.label('L_ch_st_no')
        A('s_sleep 1')
        A(f's_add_u32 {s(e.sCnt)}, {s(e.sCnt)}, 1')
        A(f's_cmp_lt_u32 {s(e.sCnt)}, 0x40000')
        A('s_cbranch_scc1 L_ch_st')
        A(f's_branch {fail}')
        A.label('L_ch_st_ok')
        A(f's_sub_u32 {s(e.sPar)}, {s(e.sPar)}, 1')
        A(f's_cmp_lt_u32 {s(sSlow)}, 32')
        A(f's_cselect_b32 {s(sSlow)}, 1, 0')
    e.start = start
    sX, sR, sT, sU = 20, 21, 22, 23
    A('s_cmp_ge_u32 s2, 256')
    A('s_cbranch_scc1 L_exit')
    A('s_load_dwordx4 s[16:19], s[0:1], 120')
    if fake_xcc is None:
        A(f's_getreg_b32 {s(sX)}, hwreg(HW_REG_XCC_ID, 0, 4)')
    else:
        fake_xcc(A, sX)
    A('v_lshrrev_b32 v1, 6, v0')
    A(f'v_readfirstlane_b32 {s(e.sWave)}, v1')
    A(f's_min_u32 {s(sX)}, {s(sX)}, 8')
    A('s_waitcnt lgkmcnt(0)')
    srd(A, e.sDBG, 16, 256)
    srd(A, e.sWS, 18, WS_BYTES)
    e.mark(A, 0, 1, 2)

    def ticket(name, saddr, warm=False):
        A('v_mov_b32 v1, 1')
        A(f'v_mov_b32 v2, {saddr}')
        A('v_mov_b32 v3, 0')
        A(f's_cmp_lg_u32 {s(e.sWave)}, 0')
        A(f's_cbranch_scc1 {name}')
        A('s_mov_b64 exec, 1')
        A(f'buffer_atomic_add v1, v2, {s(e.sDBG,4)}, 0 offen sc0 sc1')
        if warm:
            A(f'v_mov_b32 v4, {PROBE_OFF + 1024}')
            A(f'buffer_load_dword v5, v4, {s(e.sWS,4)}, 0 offen')
        A('s_waitcnt vmcnt(0)')
        A('ds_write_b32 v3, v1')
        A('s_waitcnt lgkmcnt(0)')
        A('s_mov_b64 exec, -1')
        A.label(name)
        A('s_barrier')
        A('ds_read_b32 v1, v3')
        A('s_waitcnt lgkmcnt(0)')
        A(f'v_readfirstlane_b32 {s(sR)}, v1')
        A('s_barrier')
    A(f's_and_b32 {s(sT)}, {s(sX)}, 3')
    A(f's_lshl_b32 {s(sT)}, {s(sT)}, 6')
    A(f's_and_b32 {s(sU)}, {s(sX)}, 12')
    A(f's_add_u32 {s(sT)}, {s(sT)}, {s(sU)}')
    ticket('L_tk0', s(sT), True)
    A(f's_cmp_lt_u32 {s(sX)}, 8')
    A(f's_cselect_b32 {s(sT)}, 32, 0')
    A(f's_cmp_lt_u32 {s(sR)}, {s(sT)}')
    A('s_cbranch_scc1 L_have_role')
    counts(A, 'L_sp_cnt', e, 1, 2, SC, e.sCnt, 'L_fail')
    for x in range(8):
        A(f's_min_u32 {s(SC+x)}, {s(SC+x)}, 32')
    ticket('L_tk1', DBG_TK2)
    for x in range(8):
        A(f's_sub_u32 {s(sT)}, 32, {s(SC+x)}')
        A(f's_mov_b32 {s(sX)}, {x}')
        A(f's_add_u32 {s(sU)}, {s(sR)}, {s(SC+x)}')
        A(f's_cmp_lt_u32 {s(sR)}, {s(sT)}')
        A('s_cbranch_scc1 L_took')
        A(f's_sub_u32 {s(sR)}, {s(sR)}, {s(sT)}')
    A('s_branch L_exit')
    A.label('L_took')
    A(f's_mov_b32 {s(sR)}, {s(sU)}')
    A.label('L_have_role')
    if marks:
        A(f's_lshl_b32 {s(sT)}, {s(sX)}, 8')
        A(f's_or_b32 {s(sT)}, {s(sT)}, {s(sR)}')
        A(f'v_mov_b32 v1, {s(sT)}'); A('v_mov_b32 v2, s2'); A('v_lshlrev_b32 v2, 6, v2'); A(f'v_add_u32 v2, {MARK_OFF + 60}, v2')
        A(f'buffer_store_dword v1, v2, {s(e.sWS,4)}, 0 offen')
    e.mark(A, 1, 1, 2)
    A(f's_cmp_ge_u32 {s(sX)}, 4')
    A('s_cbranch_scc1 L_worker')
    A(f's_cmp_lt_u32 {s(sR)}, 8')
    A('s_cbranch_scc1 L_role_aux')
    A(f's_mul_i32 {s(e.sRole)}, {s(sX)}, 24')
    A(f's_add_u32 {s(e.sRole)}, {s(e.sRole)}, {s(sR)}')
    A(f's_sub_u32 {s(e.sRole)}, {s(e.sRole)}, 8')
    role_chain.gen_chain(A, e, e.sFree, **chain_kw)
    A.label('L_worker')
    A(f's_sub_u32 {s(sX)}, {s(sX)}, 4')
    A(f's_lshl_b32 {s(e.sRole)}, {s(sX)}, 3')
    A(f's_lshr_b32 {s(sT)}, {s(sR)}, 2')
    A(f's_add_u32 {s(e.sRole)}, {s(e.sRole)}, {s(sT)}')
    A(f's_and_b32 {s(sR)}, {s(sR)}, 3')
    A(f's_cmp_eq_u32 {s(sR)}, 1')
    A('s_cbranch_scc1 L_role_v')
    A(f's_cmp_eq_u32 {s(sR)}, 2')
    A('s_cbranch_scc1 L_role_qa')
    A(f's_cmp_eq_u32 {s(sR)}, 3')
    A('s_cbranch_scc1 L_role_wo')
    role_kv.gen_kv(A, e, False, done='L_post', **kv_kw)
    A.label('L_role_v')
    A(f's_add_u32 {s(e.sRole)}, {s(e.sRole)}, 32')
    role_kv.gen_kv(A, e, True, done='L_post', **kv_kw)
    role_post.gen_post(A, e)
    A.label('L_role_aux')
    A(f's_lshl_b32 {s(e.sRole)}, {s(sX)}, 3')
    A(f's_add_u32 {s(e.sRole)}, {s(e.sRole)}, {s(sR)}')
    role_post.gen_aux(A, e, **aux_kw)
    A.label('L_role_qa')
    role_qa.gen_qa(A, e, **qa_kw)
    A.label('L_role_wo')
    role_wo.gen_wo(A, e, **wo_kw)
    A.label('L_fail')
    A('s_mov_b64 exec, -1')
    A('v_mov_b32 v1, 0xdead')
    A(f'v_mov_b32 v2, {DBG_FAIL}')
    A(f'buffer_store_dword v1, v2, {s(e.sDBG,4)}, 0 offen sc1')
    A('s_waitcnt vmcnt(0)')
    A.label('L_exit')
    if marks:
        A('s_cmp_ge_u32 s2, 256')
        A('s_cbranch_scc1 L_exit2')
        A('s_mov_b64 exec, -1')
        e.mark(A, 7, 1, 2)
        A.label('L_exit2')
    A('s_endpgm')
    return A.finalize()


def whole(**kw):
    here = os.path.dirname(os.path.abspath(__file__))
    ref = open(os.path.join(here, '..', 'cdna_kernels', NAME[:-7] + '.s.ref')).read()
    head = ref[:ref.index('; Override launch geometry')]
    head += f'; @launch grid=(256,1,1) block=(256,1,1) lds={LDS}\n'
    head += ('; One persistent launch, one workgroup per CU, five roles picked at run time (generated by tools/gen_all.py):\n'
             ';   chain  96 WGs  the sequential memory recurrence, weights resident in registers\n'
             ';   K, V   64 WGs  x Wk / x Wv per head; afterwards the long convolution, the gate and the final mix\n'
             ';   QA     32 WGs  x Wq and the attention of the token rows\n'
             ';   WO     32 WGs  the output projection\n')
    txt = head + '.amdgcn_target "amdgcn-amd-amdhsa--gfx950"\n.text\n'
    txt += f'.globl {NAME}\n.p2align 8\n.type {NAME},@function\n{NAME}:\n' + body(**kw)
    txt += f'''.section .rodata,"a"
.p2align 6
.amdhsa_kernel {NAME}
  .amdhsa_next_free_vgpr 512
  .amdhsa_next_free_sgpr 102
  .amdhsa_accum_offset 256
  .amdhsa_group_segment_fixed_size 0
  .amdhsa_kernarg_size 136
  .amdhsa_user_sgpr_count 2
  .amdhsa_user_sgpr_kernarg_segment_ptr 1
  .amdhsa_system_sgpr_workgroup_id_x 1
.end_amdhsa_kernel
'''
    return txt


if __name__ == '__main__':
    out = sys.argv[1] if len(sys.argv) > 1 else os.path.join(os.path.dirname(os.path.abspath(__file__)), '..', 'cdna_kernels', NAME[:-7] + '.s')
    kw = eval(sys.argv[2]) if len(sys.argv) > 2 else {}
    t = whole(**kw)
    open(out, 'w').write(t)
    print('wrote', out, len(t), 'bytes')
```
